```python
import torch

def _softmax(x, axis=-1):
    return torch.softmax(x, dim=axis)
def _gelu(x):
    return torch.nn.functional.gelu(x, approximate="tanh")
def _silu(x):
    return torch.nn.functional.silu(x)
def _sigmoid(x):
    return torch.sigmoid(x)
def _layernorm(x, axis=-1, eps=1e-5):
    m = x.mean(dim=axis, keepdim=True)
    v = x.var(dim=axis, keepdim=True, unbiased=False)
    return (x - m) / torch.sqrt(v + eps)
def _scatter_add(tgt, idx, src, axis=0):
    return tgt.clone().index_add_(axis, idx, src)
def _segment_sum(src, seg, n):
    out = torch.zeros((n,) + src.shape[1:], dtype=src.dtype)
    return out.index_add_(0, seg, src)
def _pad(x, pw):
    flat = tuple(v for pair in reversed(pw) for v in pair)
    return torch.nn.functional.pad(x, flat)

kernel_name = 'parallel_sum__linear_attn_block__glu_gated_glu__prompt'

def setup_inputs():

    _w = (lambda a: (lambda t: t.to(torch.bfloat16) if t.is_floating_point() else t)(torch.as_tensor(a)))
    def _A_setup():
        B, S, D = 1, 2048, 640
        return {
            "x": _w((lambda *s: torch.randn(*s, dtype=torch.bfloat16) * 0.05)(B, S, D)),
            "wqkv": _w((lambda *s: torch.randn(*s, dtype=torch.bfloat16) * 0.2)(D, 3 * D)),
            "wo": _w((lambda *s: torch.randn(*s, dtype=torch.bfloat16) * 0.2)(D, D)),
        }
    _A_in = _A_setup()

    def _B_setup():
        B, S, D, F = 1, 2048, 640, 1728
        return {
            "x": _w((lambda *s: torch.randn(*s, dtype=torch.bfloat16) * 0.05)(B, S, D)),
            "w_gate": _w((lambda *s: torch.randn(*s, dtype=torch.bfloat16) * 0.05)(D, F)),
            "w_up": _w((lambda *s: torch.randn(*s, dtype=torch.bfloat16) * 0.05)(D, F)),
            "w_down": _w((lambda *s: torch.randn(*s, dtype=torch.bfloat16) * 0.05)(F, D)),
        }
    _B_in = _B_setup()

    return {
        "A_x": _A_in["x"],
        "A_wqkv": _A_in["wqkv"],
        "A_wo": _A_in["wo"],
        "B_x": _B_in["x"],
        "B_w_gate": _B_in["w_gate"],
        "B_w_up": _B_in["w_up"],
        "B_w_down": _B_in["w_down"],
    }

def reference(A_x, A_wqkv, A_wo, B_x, B_w_gate, B_w_up, B_w_down):
    def _A_ref(x, wqkv, wo):
        B, S, D = x.shape
        H = 32; Dh = D // H
        qkv = (lambda x, *d: x.permute(*d))((x @ wqkv).reshape(B, S, 3, H, Dh), 2, 0, 3, 1, 4)
        q, k, v = qkv[0], qkv[1], qkv[2]
        phi = lambda t: torch.where(t > 0, t + 1, torch.exp(t)) + 1e-6
        pq, pk = phi(q), phi(k)
        kv = torch.einsum("bhsd,bhse->bhde", pk, v)
        z = torch.einsum("bhsd->bhd", pk)
        num = torch.einsum("bhqd,bhde->bhqe", pq, kv)
        den = torch.einsum("bhqd,bhd->bhq", pq, z)[..., None] + 1e-6
        o = num / den
        return (lambda x, *d: x.permute(*d))(o, 0, 2, 1, 3).reshape(B, S, D) @ wo

    def _B_ref(x, w_gate, w_up, w_down):
        g = torch.einsum("bsd,df->bsf", x, w_gate)
        u = torch.einsum("bsd,df->bsf", x, w_up)
        h = _sigmoid(g) * u
        return torch.einsum("bsf,fd->bsd", h, w_down)

    x = A_x
    xn = _layernorm(x, axis=-1)
    return x + _A_ref(xn, A_wqkv, A_wo) + _B_ref(xn, B_w_gate, B_w_up, B_w_down)
```

```python
class Asm:
    def __init__(self):
        self.L = []
        self.uid = 0
    def __call__(self, s):
        for line in s.split("\n"):
            line = line.strip()
            if line: self.L.append("  " + line if not line.endswith(":") else line)
    def label(self, name): self.L.append(name + ":")
    def newlabel(self, base="L"):
        self.uid += 1
        return f"{base}_{self.uid}"
    def comment(self, s): self.L.append("  ; " + s)
    def text(self): return "\n".join(self.L) + "\n"

def vr(b, n=1): return f"v{b}" if n == 1 else f"v[{b}:{b+n-1}]"
def ar(b, n=1): return f"a{b}" if n == 1 else f"a[{b}:{b+n-1}]"
def sr(b, n=1): return f"s{b}" if n == 1 else f"s[{b}:{b+n-1}]"

def kd(name, vgpr, accum, sgpr=102):
    return f""".section .rodata,"a"
.p2align 6
.amdhsa_kernel {name}
  .amdhsa_next_free_vgpr {vgpr}
  .amdhsa_next_free_sgpr {sgpr}
  .amdhsa_accum_offset {accum}
  .amdhsa_group_segment_fixed_size 0
  .amdhsa_kernarg_size 80
  .amdhsa_user_sgpr_count 2
  .amdhsa_user_sgpr_kernarg_segment_ptr 1
  .amdhsa_system_sgpr_workgroup_id_x 1
.end_amdhsa_kernel
.text
"""
def head(name):
    return f".globl {name}\n.p2align 8\n.type {name},@function\n{name}:\n"

def srd(a, d, lo, hi, nbytes, add=0):
    if add:
        a(f"s_add_u32 s{d}, s{lo}, {add}")
        a(f"s_addc_u32 s{d+1}, s{hi}, 0")
    else:
        a(f"s_mov_b32 s{d}, s{lo}")
        a(f"s_mov_b32 s{d+1}, s{hi}")
    a(f"s_mov_b32 s{d+2}, {nbytes}")
    a(f"s_mov_b32 s{d+3}, 0x00020000")

WS_STAMP = 0xF00000
def stamp_out(a, lo, hi, nw, wave_sgpr, slot=0):
    a("s_waitcnt vmcnt(0) lgkmcnt(0)")
    a("s_memrealtime s[92:93]")
    a("s_waitcnt lgkmcnt(0)")
    a(f"s_add_u32 s96, s{lo}, {WS_STAMP + slot*65536}")
    a(f"s_addc_u32 s97, s{hi}, 0")
    a("s_mov_b32 s98, 65536")
    a("s_mov_b32 s99, 0x00020000")
    a(f"s_mul_i32 s94, s2, {nw}")
    a(f"s_add_u32 s94, s94, {wave_sgpr}")
    a("s_lshl_b32 s94, s94, 4")
    a("v_mov_b32 v0, s90")
    a("v_mov_b32 v1, s91")
    a("v_mov_b32 v2, s92")
    a("v_mov_b32 v3, s93")
    a("v_mov_b32 v4, s94")
    a("s_mov_b64 exec, 1")
    a("buffer_store_dwordx4 v[0:3], v4, s[96:99], 0 offen")
```

```python
from asmlib import *
from layout import *

T0BUF, T1BUF = 0, 16384
XST = 0
XSLOT = 4160
XWAVE = 3 * XSLOT
EBUF = 49920
RING0 = 66560
MISC = 159744
RING_END = MISC
ST_RSTD = MISC
ST_MR = MISC + 512
CS = MISC + 1024
CS_STRIDE = 384
ZL = MISC + 3072
LDS_BYTES = 163840
FRA = 32768
FRB = RING0 + 81920
KVC = 32768
KVF = 40960
W2S = 49920
PD, NB = 4, 5
LOG2E = 0x3fb8aa3b
OPT = dict(mapv=0, stamp=0)

class Q:
    def __init__(self): self.n = 0
    def issue(self, k=1):
        self.n += k
        return self.n
    def left(self, seq): return self.n - seq

def passes_for(typ):
    if typ == "Q": return [("q", 3, True), ("G", 2, True), ("U", 2, True), ("G", 2, True), ("U", 2, True)]
    return [("k", 3, False), ("v", 2, False), ("G", 2, True), ("U", 2, True), ("H", 2, True)]

def stage_plan(npass=5):
    sizes = [24576] * 5 + [16384] * (5 * (npass - 1))
    pos = []; p = RING0
    for s, sz in enumerate(sizes):
        if p + sz > RING_END: p = RING0
        pos.append(p); p += sz
    earliest = []
    for s, sz in enumerate(sizes):
        e = 0
        for s2 in range(s):
            if pos[s2] < pos[s] + sz and pos[s] < pos[s2] + sizes[s2]: e = max(e, s2 + 3)
        earliest.append(e)
    return pos, sizes, earliest

VA = 0
SA, SB, EE = 160, 192, 224
V_AD0, V_AD1, V_TR20, V_DW = 244, 245, 246, 247
V_XR0, V_XR1, V_XD, V_TR3, V_LANE = 248, 249, 250, 251, 252

def acc_regs(X, tau):
    if X == 0: return [SA, SA + 16, EE][tau]
    return (SB if X % 2 == 1 else SA) + 16 * tau
def bbuf(X, i):
    if X == 0: return SB + 4 * i
    return EE + 4 * i

def items_of(X, T):
    if X == 0:
        it = []
        for c in range(8):
            for tau in range(T):
                for i in range(4): it.append((4 * c + i, tau))
        for tau in (2, 0, 1):
            for i in range(8): it.append((32 + i, tau))
        return it
    return [(b * 8 + i, tau) for b in range(5) for tau in range(T) for i in range(8)]

class Compute:
    def __init__(self, a, typ, npass):
        self.a = a; self.typ = typ
        self.lq = Q(); self.pend = {}
        self.ps = passes_for(typ)[:npass]
        self.pos, self.sizes, _ = stage_plan(npass)
    def set_addr(self, s):
        a = self.a; T = self.ps[s // 5][1]
        if T == 2:
            a(f"v_add_u32 v{V_AD0}, {self.pos[s]}, v{V_TR20}")
            a(f"v_xor_b32 v{V_AD1}, 64, v{V_AD0}")
        else:
            a(f"v_add_u32 v{V_AD0}, {self.pos[s]}, v{V_TR3}")
    def reads(self, X, n):
        a = self.a; T = self.ps[X][1]
        t, tau = items_of(X, T)[n]
        tl = t % 8
        if T == 2: reg, o1, o2 = (V_AD0 if tau == 0 else V_AD1), tl * 2048, tl * 2048 + 512
        else: reg, o1, o2 = V_AD0, tl * 3072 + tau * 64, tl * 3072 + tau * 64 + 768
        b = bbuf(X, n % NB)
        a(f"ds_read_b64_tr_b16 {vr(b,2)}, v{reg} offset:{o1}")
        a(f"ds_read_b64_tr_b16 {vr(b+2,2)}, v{reg} offset:{o2}")
        self.pend[(X, n)] = self.lq.issue(2)
    def mfma(self, X, n):
        a = self.a; T, sw = self.ps[X][1], self.ps[X][2]
        t, tau = items_of(X, T)[n]
        a(f"s_waitcnt lgkmcnt({min(self.lq.left(self.pend[(X, n)]), 15)})")
        acc = vr(acc_regs(X, tau), 16)
        c = "0" if t == 0 else acc
        w = vr(bbuf(X, n % NB), 4); x = vr(VA + 4 * t, 4)
        if sw: a(f"v_mfma_f32_32x32x16_bf16 {acc}, {w}, {x}, {c}")
        else: a(f"v_mfma_f32_32x32x16_bf16 {acc}, {x}, {w}, {c}")
    def dump(self, X, tau, q):
        base = [T0BUF, T1BUF, EBUF][tau]
        self.a(f"ds_write_b128 v{V_DW}, {vr(acc_regs(X, tau) + 4*q, 4)} offset:{base + q*1024}")
        self.lq.issue(1)

def x_issue(a, vq, c):
    a(f"s_add_u32 m0, s71, {(c % 3) * XSLOT}")
    a(f"s_add_u32 s73, s72, {c * 128}")
    for i in range(4):
        a(f"buffer_load_dwordx4 v{V_XD}, s[28:31], s73 offen lds")
        if i < 3:
            a(f"s_add_u32 m0, m0, 1040")
            a(f"s_add_u32 s73, s73, {8 * 1280}")
    return vq.issue(4)

def dump_plan(typ, X, npass):
    if X == npass - 1: return "last"
    if typ == "KV" and X == 1: return "burst"
    return "spread"

def gen_compute(a, typ, npass):
    C = Compute(a, typ, npass)
    vq = Q(); vq.issue(12)
    xseq = {0: 4, 1: 8, 2: 12}; xread = {}
    def x_reads(c):
        a(f"s_waitcnt vmcnt({vq.left(xseq[c])})")
        for u in range(4):
            t = 4 * c + u
            reg = V_XR0 if (u >> 1) == 0 else V_XR1
            a(f"ds_read_b128 {vr(VA+4*t,4)}, v{reg} offset:{(c%3)*XSLOT + (u&1)*32}")
        xread[c] = C.lq.issue(4)
    flat = [(X, n) for X, (nm, T, sw) in enumerate(C.ps) for n in range(40 * T)]
    stage_of = lambda X, n: 5 * X + items_of(X, C.ps[X][1])[n][0] // 8
    x_reads(0)
    a("s_barrier")
    C.set_addr(0)
    for i in range(PD): C.reads(*flat[i])
    cur_stage = 0
    pend_dump = []
    for f, (X, n) in enumerate(flat):
        T = C.ps[X][1]
        it = items_of(X, T); t, tau = it[n]
        if f + PD < len(flat):
            X2, n2 = flat[f + PD]
            s2 = stage_of(X2, n2)
            if s2 != cur_stage:
                a("s_barrier"); cur_stage = s2
                C.set_addr(s2)
            C.reads(X2, n2)
        if X == 0:
            if n < 96:
                if n % 12 == 0:
                    c = n // 12
                    a(f"s_waitcnt lgkmcnt({min(C.lq.left(xread[c]), 15)})")
                    if c + 3 < 10: xseq[c + 3] = x_issue(a, vq, c + 3)
            elif n == 96:
                a(f"s_waitcnt lgkmcnt({min(C.lq.left(xread[9]), 15)})")
        C.mfma(X, n)
        if X == 0:
            if n < 96 and n % 12 == 5: x_reads(n // 12 + 1)
            if n == 96 - 2: x_reads(9)
        N = 40 * T
        if X == 0 and n == 96 + 7:
            for q in range(4): pend_dump.append((f + 3 + 4 * q, 0, 2, q))
        if n == N - 1 or n == N - 9:
            mode = dump_plan(typ, X, npass)
            if mode == "spread" and n == N - 1:
                if X == npass - 2:
                    for q in range(4): pend_dump.append((f + 2 + 5 * q, X, 0, q))
                    for q in range(4): pend_dump.append((f + 34 + 5 * q, X, 1, q))
                else:
                    for q in range(4): pend_dump.append((f + 2 + 7 * q, X, 0, q))
                    for q in range(4): pend_dump.append((f + 34 + 7 * q, X, 1, q))
            elif mode == "burst":
                for q in range(4): pend_dump.append((f + 3 + q, X, 0 if n == N - 9 else 1, q))
        pend_dump.sort()
        while pend_dump and pend_dump[0][0] <= f:
            _, Xd, td, q = pend_dump.pop(0)
            C.dump(Xd, td, q)
    assert not pend_dump, pend_dump
    X = npass - 1
    a(f"v_add_u32 v{V_AD0}, {last_dump_pos(npass)[0]}, v{V_DW}")
    a(f"v_add_u32 v{V_AD1}, {last_dump_pos(npass)[1]}, v{V_DW}")
    a("s_nop 7")
    for tau in range(2):
        for q in range(4):
            a(f"ds_write_b128 v{V_AD0 + tau}, {vr(acc_regs(X, tau) + 4*q, 4)} offset:{q*1024}")
    a("s_waitcnt lgkmcnt(0)")
    a("s_barrier")

def last_dump_pos(npass):
    pos, _, _ = stage_plan(npass)
    return pos[5 * npass - 5], pos[5 * npass - 4]

def compute_setup(a):
    srd(a, 28, 4, 5, S * D * 2)
    L = V_LANE
    a(f"v_and_b32 v{L}, 63, v0")
    a(f"v_lshrrev_b32 v1, 3, v{L}")
    a(f"v_and_b32 v2, 7, v{L}")
    a(f"v_bfe_u32 v3, v{L}, 4, 1")
    a(f"v_lshlrev_b32 v3, 2, v3")
    a(f"v_xor_b32 v2, v2, v3")
    a(f"v_lshlrev_b32 v2, 4, v2")
    a(f"v_mul_u32_u24 v1, 1280, v1")
    a(f"v_add_u32 v{V_XD}, v1, v2")
    a(f"s_mul_i32 s71, s24, {XWAVE}")
    if XST: a(f"s_add_u32 s71, s71, {XST}")
    a("s_lshl_b32 s72, s25, 7")
    a("s_lshl_b32 s73, s24, 5")
    a("s_add_u32 s72, s72, s73")
    a("s_mul_i32 s72, s72, 1280")
    vq0 = Q()
    for c in range(3): x_issue(a, vq0, c)
    a(f"v_and_b32 v1, 31, v{L}")
    a(f"v_lshrrev_b32 v2, 5, v{L}")
    a(f"v_lshrrev_b32 v3, 3, v1")
    a(f"v_mul_u32_u24 v3, 1040, v3")
    a(f"v_and_b32 v4, 7, v1")
    a(f"v_lshlrev_b32 v4, 7, v4")
    a(f"v_add_u32 v3, v3, v4")
    a(f"v_lshlrev_b32 v4, 4, v2")
    a(f"v_add_u32 v3, v3, v4")
    a(f"v_add_u32 v3, s71, v3")
    a(f"v_bfe_u32 v4, v1, 1, 1")
    a(f"v_lshlrev_b32 v5, 6, v4")
    a(f"v_add_u32 v{V_XR0}, v3, v5")
    a(f"v_xor_b32 v5, 64, v5")
    a(f"v_add_u32 v{V_XR1}, v3, v5")
    a(f"v_bfe_u32 v3, v{L}, 2, 2")
    a(f"v_lshlrev_b32 v4, 3, v2")
    a(f"v_add_u32 v4, v4, v3")
    a(f"v_bfe_u32 v5, v{L}, 4, 1")
    a(f"v_lshlrev_b32 v5, 5, v5")
    a(f"v_and_b32 v6, 3, v{L}")
    a(f"v_lshlrev_b32 v6, 3, v6")
    a(f"v_add_u32 v5, v5, v6")
    a(f"v_lshlrev_b32 v6, 7, v4")
    a(f"v_add_u32 v6, v6, v5")
    a(f"v_lshrrev_b32 v7, 1, v3")
    a(f"v_lshlrev_b32 v7, 6, v7")
    a(f"v_add_u32 v{V_TR20}, v6, v7")
    a(f"v_mul_u32_u24 v6, 192, v4")
    a(f"v_add_u32 v{V_TR3}, v6, v5")
    a("s_lshl_b32 s73, s24, 12")
    a(f"v_lshlrev_b32 v1, 4, v{L}")
    a(f"v_add_u32 v{V_DW}, s73, v1")

AV_P2G, AV_P2W, AV_P2H = 8, 9, 10
AV_P3 = 11
AV_L16, AV_LANE = 14, 15
AV_RSTD, AV_MR, AV_C1, AV_C2 = 16, 17, 18, 19
AV_DR = 20
AV_CSA = 21
AV_ACT = 22
AV_HF, AV_L31 = 23, 24
AV_T = 25
SIG = 32
WD, WC, WT = 64, 80, 96
PQ = 128
W2 = 176


def fbits(x):
    import struct
    return "0x%08x" % struct.unpack("<I", struct.pack("<f", x))[0]

class Aux:
    def __init__(self, a, typ):
        self.a = a; self.typ = typ
        self.vq = Q(); self.lq = Q()
        self.stage_seq = {}
        self.passes = passes_for(typ)
        self.pos, self.sizes, self.earliest = stage_plan(5)
    def col_base(self, X, dst):
        a = self.a; name = self.passes[X][0]
        if name in ("G", "U"):
            src = 32 if name == "G" else 36
            if self.typ == "Q":
                a(f"s_lshl_b32 s{dst}, s26, 8")
                if X >= 3: a(f"s_add_u32 s{dst}, s{dst}, 128")
            else:
                a(f"s_lshl_b32 s{dst}, s26, 7"); a(f"s_add_u32 s{dst}, s{dst}, 2048")
            return src, 3456
        if name == "H":
            a(f"s_lshl_b32 s{dst}, s26, 6"); a(f"s_add_u32 s{dst}, s{dst}, 3072"); return 32, 3456
        off = {"q": 0, "k": 1280, "v": 2560}[name]
        a(f"s_mul_i32 s{dst}, s26, 160")
        if off: a(f"s_add_u32 s{dst}, s{dst}, {off}")
        return 28, 3840
    def issue_stage(self, s):
        a = self.a; X, sg = divmod(s, 5)
        if sg == 0:
            src, pitch = self.col_base(X, 68)
            for i in range(4): a(f"s_mov_b32 s{64+i}, s{src+i}")
            a(f"s_mul_i32 s69, s24, {32*pitch}")
            a("s_add_u32 s68, s68, s69")
            self.pitch = pitch
        name, T, _ = self.passes[X]; pitch = self.pitch
        slot = self.pos[s]
        if T == 2:
            a(f"s_lshl_b32 s69, s24, 12")
            a(f"s_add_u32 m0, s69, {slot}")
            a(f"s_mov_b32 s80, s68")
            for i in range(4):
                if name == "H":
                    a("s_mov_b64 exec, s[76:77]")
                    a(f"buffer_load_dwordx4 v{AV_P2H}, s[32:35], s80 offen lds")
                    a("s_mov_b64 exec, s[78:79]")
                    a(f"buffer_load_dwordx4 v{AV_P2H}, s[36:39], s80 offen lds")
                    a("s_mov_b64 exec, -1")
                    self.vq.issue(2)
                else:
                    v = AV_P2W if name == "v" else AV_P2G
                    a(f"buffer_load_dwordx4 v{v}, s[64:67], s80 offen lds")
                    self.vq.issue(1)
                if i < 3:
                    a("s_add_u32 m0, m0, 1024")
                    a(f"s_add_u32 s80, s80, {8*pitch}")
        else:
            a(f"s_mul_i32 s69, s24, 6144")
            a(f"s_add_u32 m0, s69, {slot}")
            a(f"s_mov_b32 s80, s68")
            for i in range(6):
                a(f"buffer_load_dwordx4 v{AV_P3 + i%3}, s[64:67], s80 offen lds")
                self.vq.issue(1)
                if i < 5: a("s_add_u32 m0, m0, 1024")
                if i == 2: a(f"s_add_u32 s80, s80, {16*pitch}")
                elif i < 5: a("s_nop 0")
        a(f"s_add_u32 s68, s68, {128*pitch}")
        self.stage_seq[s] = self.vq.n
    def wait_vm(self, seq):
        self.a(f"s_waitcnt vmcnt({min(63, self.vq.left(seq))})")
    def wait_lg(self, seq):
        self.a(f"s_waitcnt lgkmcnt({min(15, self.lq.left(seq))})")

def aux_setup(a, typ):
    L = AV_LANE
    a(f"v_and_b32 v{L}, 63, v0")
    a(f"v_lshlrev_b32 v{AV_L16}, 4, v{L}")
    a(f"v_lshrrev_b32 v1, 3, v{L}")
    a(f"v_bfe_u32 v2, v{L}, 2, 1")
    a(f"v_bfe_u32 v3, v{L}, 4, 1")
    a(f"v_xor_b32 v2, v2, v3")
    a(f"v_and_b32 v3, 3, v{L}")
    a(f"v_lshlrev_b32 v3, 4, v3")
    a(f"v_lshlrev_b32 v4, 6, v2")
    a(f"v_add_u32 v4, v4, v3")
    a(f"v_mul_u32_u24 v5, 3456, v1")
    a(f"v_add_u32 v{AV_P2G}, v5, v4")
    a(f"v_add_u32 v{AV_P2H}, v5, v3")
    a(f"v_mul_u32_u24 v5, 3840, v1")
    a(f"v_add_u32 v{AV_P2W}, v5, v4")
    a(f"v_cmp_eq_u32 s[76:77], 0, v2")
    a(f"v_cmp_eq_u32 s[78:79], 1, v2")
    for i in range(3):
        a(f"v_add_u32 v1, {64*i}, v{L}")
        a(f"v_mul_u32_u24 v2, 171, v1")
        a(f"v_lshrrev_b32 v2, 11, v2")
        a(f"v_mul_u32_u24 v3, 12, v2")
        a(f"v_sub_u32 v3, v1, v3")
        a(f"v_lshlrev_b32 v4, 4, v3")
        if typ == "KV":
            a(f"v_add_u32 v5, 1248, v4")
            a(f"v_cmp_le_u32 vcc, 10, v3")
            a("s_nop 1")
            a(f"v_cndmask_b32 v4, v4, v5, vcc")
        a(f"v_mul_u32_u24 v5, 3840, v2")
        a(f"v_add_u32 v{AV_P3+i}, v5, v4")
    a(f"v_lshrrev_b32 v{AV_HF}, 5, v{L}")
    a(f"v_and_b32 v{AV_L31}, 31, v{L}")
    a("s_lshl_b32 s69, s24, 12")
    a(f"v_add_u32 v{AV_DR}, s69, v{AV_L16}")
    a(f"v_lshlrev_b32 v1, 4, v{AV_HF}")
    a(f"v_add_u32 v{AV_CSA}, {CS}, v1")

def task_stats_load(A):
    a = A.a
    a("s_lshl_b32 s80, s25, 7")
    a("s_lshl_b32 s81, s19, 3")
    a("s_add_u32 s80, s80, s81")
    a("s_lshl_b32 s81, s24, 1")
    a("s_add_u32 s80, s80, s81")
    a(f"v_add_u32 v{W2}, s80, v{AV_HF}")
    a(f"v_mul_u32_u24 v{W2+1}, 1280, v{W2}")
    a(f"v_lshlrev_b32 v{W2+2}, 4, v{AV_L31}")
    a(f"v_add_u32 v{W2+1}, v{W2+1}, v{W2+2}")
    a(f"v_cmp_gt_u32 vcc, 16, v{AV_L31}")
    a(f"v_mov_b32 v{W2+3}, 0x7f000000")
    a(f"v_lshlrev_b32 v{W2}, 3, v{W2}")
    a(f"v_cndmask_b32 v{W2+2}, v{W2+3}, v{W2+1}, vcc")
    a(f"buffer_load_dwordx4 {vr(W2+4,4)}, v{W2+1}, s[72:75], 0 offen")
    a(f"buffer_load_dwordx4 {vr(W2+8,4)}, v{W2+1}, s[72:75], 0 offen offset:512")
    a(f"buffer_load_dwordx4 {vr(W2+12,4)}, v{W2+2}, s[72:75], 0 offen offset:1024")
    A.st_seq = A.vq.issue(3)

def red32(a, v, t):
    a("s_nop 1")
    a(f"v_add_f32_dpp v{v}, v{v}, v{v} quad_perm:[1,0,3,2] row_mask:0xf bank_mask:0xf")
    a("s_nop 1")
    a(f"v_add_f32_dpp v{v}, v{v}, v{v} quad_perm:[2,3,0,1] row_mask:0xf bank_mask:0xf")
    a("s_nop 1")
    a(f"v_add_f32_dpp v{v}, v{v}, v{v} row_half_mirror row_mask:0xf bank_mask:0xf")
    a("s_nop 1")
    a(f"v_add_f32_dpp v{v}, v{v}, v{v} row_mirror row_mask:0xf bank_mask:0xf")
    a(f"v_mov_b32 v{t}, v{v}")
    a("s_nop 1")
    a(f"v_permlane16_swap_b32 v{v}, v{t}")
    a("s_nop 1")
    a(f"v_add_f32 v{v}, v{v}, v{t}")

def task_stats_compute(A):
    a = A.a
    A.wait_vm(A.st_seq)
    X = W2 + 16
    for i in range(12):
        a(f"v_lshlrev_b32 v{X+2*i}, 16, v{W2+4+i}")
        a(f"v_and_b32 v{X+2*i+1}, 0xffff0000, v{W2+4+i}")
    s0, s1 = W2 + 40, W2 + 41
    a(f"v_add_f32 v{s0}, v{X}, v{X+1}")
    a(f"v_add_f32 v{s1}, v{X+2}, v{X+3}")
    for i in range(4, 24, 2):
        a(f"v_add_f32 v{s0}, v{s0}, v{X+i}")
        a(f"v_add_f32 v{s1}, v{s1}, v{X+i+1}")
    a(f"v_add_f32 v{s0}, v{s0}, v{s1}")
    red32(a, s0, s1)
    a(f"v_mul_f32 v{s0}, {fbits(1/640)}, v{s0}")
    for i in range(24): a(f"v_sub_f32 v{X+i}, v{X+i}, v{s0}")
    a(f"v_cmp_gt_u32 vcc, 16, v{AV_L31}")
    q0, q1 = W2 + 42, W2 + 43
    a(f"v_mul_f32 v{q0}, v{X}, v{X}")
    a(f"v_mul_f32 v{q1}, v{X+1}, v{X+1}")
    for i in range(16, 24): a(f"v_cndmask_b32 v{X+i}, 0, v{X+i}, vcc")
    for i in range(2, 24, 2):
        a(f"v_fmac_f32 v{q0}, v{X+i}, v{X+i}")
        a(f"v_fmac_f32 v{q1}, v{X+i+1}, v{X+i+1}")
    a(f"v_add_f32 v{q0}, v{q0}, v{q1}")
    red32(a, q0, q1)
    a(f"v_mul_f32 v{q0}, {fbits(1/640)}, v{q0}")
    a(f"v_add_f32 v{q0}, {fbits(1e-5)}, v{q0}")
    a(f"v_rsq_f32 v{q0}, v{q0}")
    a("s_nop 0")
    a(f"v_mul_f32 v{q1}, v{s0}, v{q0}")
    assert q0 % 2 == 0
    a(f"v_cmp_eq_u32 vcc, 0, v{AV_L31}")
    a("s_nop 1")
    a("s_and_saveexec_b64 s[82:83], vcc")
    a(f"buffer_store_dwordx2 {vr(q0,2)}, v{W2}, s[84:87], 0 offen sc1")
    a("s_mov_b64 exec, s[82:83]")
    A.st_store = A.vq.issue(1)

def signal(A, seq, idx_code, name):
    a = A.a
    A.wait_vm(seq)
    idx_code()
    a(f"v_mov_b32 v{AV_T}, s80")
    a(f"v_mov_b32 v{AV_T+1}, 1")
    a("s_mov_b64 exec, 1")
    a(f"buffer_atomic_add v{AV_T+1}, v{AV_T}, s[52:55], 0 offen")
    a("s_mov_b64 exec, -1")
    A.vq.issue(1)

def poll(A, idx_code, target):
    a = A.a
    idx_code()
    a(f"v_mov_b32 v{AV_T}, s80")
    lab = a.newlabel("Lpoll")
    a.label(lab)
    a(f"buffer_load_dword v{AV_T+1}, v{AV_T}, s[52:55], 0 offen sc1")
    a("s_waitcnt vmcnt(0)")
    a(f"v_readfirstlane_b32 s81, v{AV_T+1}")
    a(f"s_cmp_ge_u32 s81, {target}")
    lab2 = a.newlabel("Lpd")
    a(f"s_cbranch_scc1 {lab2}")
    a("s_sleep 2")
    a(f"s_branch {lab}")
    a.label(lab2)
    A.vq.issue(1)

def task_cs_load(A):
    a = A.a
    a("s_mul_i32 s80, s2, 0x5556")
    a("s_lshr_b32 s80, s80, 16")
    a("s_mul_i32 s81, s80, 3")
    a("s_sub_u32 s81, s2, s81")
    a("s_mov_b32 s92, s28"); a("s_mov_b32 s93, s29"); a("s_mov_b32 s94, s30"); a("s_mov_b32 s95, 0x00020000")
    a("s_mov_b32 s82, 3840")
    a("s_lshl_b32 s83, s80, 7")
    l1 = a.newlabel("Lcs");
    a("s_cmp_lt_u32 s80, 30")
    a(f"s_cbranch_scc1 {l1}")
    a("s_mov_b32 s92, s32"); a("s_mov_b32 s93, s33"); a("s_mov_b32 s94, s34")
    a("s_mov_b32 s82, 3456")
    a(f"s_sub_u32 s83, s83, {30*128}")
    a("s_cmp_lt_u32 s80, 57")
    a(f"s_cbranch_scc1 {l1}")
    a("s_mov_b32 s92, s36"); a("s_mov_b32 s93, s37"); a("s_mov_b32 s94, s38")
    a(f"s_sub_u32 s83, s83, {27*128}")
    a.label(l1)
    a("s_lshl_b32 s69, s81, 8")
    a("s_lshl_b32 s70, s24, 6")
    a("s_add_u32 s69, s69, s70")
    a(f"v_lshrrev_b32 v{W2+48}, 3, v{AV_LANE}")
    a(f"v_add_u32 v{W2+48}, s69, v{W2+48}")
    a(f"v_mul_lo_u32 v{W2+48}, v{W2+48}, s82")
    a(f"v_and_b32 v{W2+49}, 7, v{AV_LANE}")
    a(f"v_lshlrev_b32 v{W2+49}, 4, v{W2+49}")
    a(f"v_add_u32 v{W2+48}, v{W2+48}, v{W2+49}")
    a("s_lshl_b32 s70, s82, 3")
    a("s_cmp_ge_u32 s2, 252")
    a("s_cselect_b32 s83, 0x7f000000, s83")
    a("s_mul_i32 s96, s81, 5376")
    a("s_lshl_b32 s97, s80, 6")
    a("s_add_u32 s96, s96, s97")
    a("s_lshl_b32 s96, s96, 2")
    for i in range(8):
        a(f"buffer_load_dwordx4 {vr(PQ+4*i,4)}, v{W2+48}, s[92:95], s83 offen")
        if i < 7: a("s_add_u32 s83, s83, s70")
    A.cs_seq = A.vq.issue(8)

def task_cs_compute(A):
    a = A.a
    A.wait_vm(A.cs_seq)
    acc = WD
    for i in range(8):
        for r in range(4):
            src = PQ + 4 * i + r
            if i == 0:
                a(f"v_lshlrev_b32 v{acc+2*r}, 16, v{src}")
                a(f"v_and_b32 v{acc+2*r+1}, 0xffff0000, v{src}")
            else:
                a(f"v_lshlrev_b32 v{WT+2*r}, 16, v{src}")
                a(f"v_and_b32 v{WT+2*r+1}, 0xffff0000, v{src}")
        if i:
            for e in range(8): a(f"v_add_f32 v{acc+e}, v{acc+e}, v{WT+e}")
    a("s_nop 1")
    for e in range(8): a(f"v_add_f32_dpp v{acc+e}, v{acc+e}, v{acc+e} row_ror:8 row_mask:0xf bank_mask:0xf")
    for e in range(8): a(f"v_mov_b32 v{WT+e}, v{acc+e}")
    a("s_nop 1")
    for e in range(8): a(f"v_permlane16_swap_b32 v{acc+e}, v{WT+e}")
    a("s_nop 1")
    for e in range(8): a(f"v_add_f32 v{acc+e}, v{acc+e}, v{WT+e}")
    for e in range(8): a(f"v_mov_b32 v{WT+e}, v{acc+e}")
    a("s_nop 1")
    for e in range(8): a(f"v_permlane32_swap_b32 v{acc+e}, v{WT+e}")
    a("s_nop 1")
    for e in range(8): a(f"v_add_f32 v{acc+e}, v{acc+e}, v{WT+e}")
    a("s_lshl_b32 s80, s24, 8")
    a(f"v_lshlrev_b32 v{WT}, 5, v{AV_LANE}")
    a(f"v_add_u32 v{WT}, s80, v{WT}")
    a(f"v_add_u32 v{WT}, {ZL}, v{WT}")
    a("s_mov_b64 exec, 0xff")
    a(f"ds_write_b128 v{WT}, {vr(acc,4)}")
    a(f"ds_write_b128 v{WT}, {vr(acc+4,4)} offset:16")
    a("s_mov_b64 exec, -1")
    A.lq.issue(2)
    a("s_waitcnt lgkmcnt(0)")

def task_cs_store(A):
    a = A.a
    lab = a.newlabel("Lcss")
    a("s_cmp_lg_u32 s24, 0")
    a(f"s_cbranch_scc1 {lab}")
    a(f"v_lshlrev_b32 v{WT}, 2, v{AV_LANE}")
    a(f"v_add_u32 v{WT+1}, {ZL}, v{WT}")
    for w in range(4): a(f"ds_read_b32 v{WD+w}, v{WT+1} offset:{w*256}")
    a("s_waitcnt lgkmcnt(0)")
    a(f"v_add_f32 v{WD}, v{WD}, v{WD+1}")
    a(f"v_add_f32 v{WD+2}, v{WD+2}, v{WD+3}")
    a(f"v_add_f32 v{WD}, v{WD}, v{WD+2}")
    a("s_cmp_ge_u32 s2, 252")
    a("s_cselect_b32 s80, 0x7f000000, s96")
    a(f"buffer_store_dword v{WD}, v{WT}, s[88:91], s80 offen sc1")
    a("s_waitcnt vmcnt(0)")
    a("s_and_b32 s80, s2, 7")
    a("s_lshl_b32 s80, s80, 2")
    a(f"s_add_u32 s80, s80, {DBG_CS*4}")
    a(f"v_mov_b32 v{AV_T}, s80")
    a(f"v_mov_b32 v{AV_T+1}, 1")
    a("s_mov_b64 exec, 1")
    a(f"buffer_atomic_add v{AV_T+1}, v{AV_T}, s[52:55], 0 offen")
    a("s_mov_b64 exec, -1")
    a.label(lab)
    A.vq.issue(0)

def poll_cs(A):
    a = A.a
    a(f"v_mov_b32 v{AV_T}, {DBG_CS*4}")
    lab = a.newlabel("Lpoll"); lab2 = a.newlabel("Lpd")
    a.label(lab)
    a(f"buffer_load_dwordx4 {vr(WT,4)}, v{AV_T}, s[52:55], 0 offen sc1")
    a(f"buffer_load_dwordx4 {vr(WT+4,4)}, v{AV_T}, s[52:55], 0 offen offset:16 sc1")
    a("s_waitcnt vmcnt(0)")
    a(f"v_min_u32 v{WT}, v{WT}, v{WT+1}")
    a(f"v_min_u32 v{WT+2}, v{WT+2}, v{WT+3}")
    a(f"v_min_u32 v{WT+4}, v{WT+4}, v{WT+5}")
    a(f"v_min_u32 v{WT+6}, v{WT+6}, v{WT+7}")
    a(f"v_min_u32 v{WT}, v{WT}, v{WT+2}")
    a(f"v_min_u32 v{WT+4}, v{WT+4}, v{WT+6}")
    a(f"v_min_u32 v{WT}, v{WT}, v{WT+4}")
    a("s_nop 0")
    a(f"v_readfirstlane_b32 s81, v{WT}")
    a("s_cmp_ge_u32 s81, 32")
    a(f"s_cbranch_scc1 {lab2}")
    a("s_sleep 2")
    a(f"s_branch {lab}")
    a.label(lab2)

def task_cs_fetch(A):
    a = A.a
    for X, (name, T, _) in enumerate(A.passes):
        lab = a.newlabel("Lcf")
        a(f"s_cmp_lg_u32 s24, {X % 4}")
        a(f"s_cbranch_scc1 {lab}")
        j80 = lambda dst, add: (a(f"s_mul_i32 s{dst}, s26, 80"), a(f"s_add_u32 s{dst}, s{dst}, {add}"))
        if name == "q": j80(80, 0); split = 96; a("s_mov_b32 s81, s80")
        elif name == "k": j80(80, 640); split = 80; j80(81, 1280 + 64 - 80)
        elif name == "v": j80(80, 1280); split = 96; a("s_mov_b32 s81, s80")
        elif name in ("G", "U"):
            b = 1920 if name == "G" else 3648
            if A.typ == "Q":
                a("s_lshl_b32 s80, s26, 7"); a(f"s_add_u32 s80, s80, {b + (64 if X >= 3 else 0)}")
            else:
                a("s_lshl_b32 s80, s26, 6"); a(f"s_add_u32 s80, s80, {b + 1024}")
            split = 96; a("s_mov_b32 s81, s80")
        else:
            a("s_lshl_b32 s80, s26, 5"); a(f"s_add_u32 s81, s80, {3648 + 1536 - 32}"); a(f"s_add_u32 s80, s80, {1920 + 1536}")
            split = 32
        for rnd in range(2 if T == 3 else 1):
            c = WT + 8 * rnd
            a(f"v_add_u32 v{c}, {64*rnd}, v{AV_LANE}")
            a(f"v_mov_b32 v{c+1}, s80")
            a(f"v_mov_b32 v{c+2}, s81")
            a(f"v_cmp_gt_u32 vcc, {split}, v{c}")
            a("s_nop 1")
            a(f"v_cndmask_b32 v{c+1}, v{c+2}, v{c+1}, vcc")
            a(f"v_add_u32 v{c+1}, v{c+1}, v{c}")
            a(f"v_lshlrev_b32 v{c+1}, 2, v{c+1}")
            for th in range(3):
                a(f"s_mov_b32 s82, {th*5376*4}")
                a(f"buffer_load_dword v{c+3+th}, v{c+1}, s[88:91], s82 offen sc1")
        a("s_waitcnt vmcnt(0)")
        for rnd in range(2 if T == 3 else 1):
            c = WT + 8 * rnd
            a(f"v_add_f32 v{c+3}, v{c+3}, v{c+4}")
            a(f"v_add_f32 v{c+3}, v{c+3}, v{c+5}")
            a(f"v_lshlrev_b32 v{c}, 2, v{c}")
            a(f"v_add_u32 v{c}, {CS + X*CS_STRIDE}, v{c}")
            if rnd == 1: a("s_mov_b64 exec, 0xffffffff")
            a(f"ds_write_b32 v{c}, v{c+3}")
            if rnd == 1: a("s_mov_b64 exec, -1")
        a.label(lab)
    a("s_waitcnt lgkmcnt(0)")

def task_stats_fetch(A):
    a = A.a
    a("s_lshl_b32 s80, s25, 7")
    a("s_lshl_b32 s81, s24, 5")
    a("s_add_u32 s80, s80, s81")
    a(f"v_add_u32 v{WT}, s80, v{AV_L31}")
    a(f"v_lshlrev_b32 v{WT}, 3, v{WT}")
    a(f"buffer_load_dwordx2 {vr(AV_RSTD,2)}, v{WT}, s[84:87], 0 offen sc1")
    a("s_waitcnt vmcnt(0)")
    a(f"v_mul_f32 v{AV_C1}, {fbits(-1.4426950408889634)}, v{AV_RSTD}")
    a(f"v_mul_f32 v{AV_C2}, {fbits(1.4426950408889634)}, v{AV_MR}")
    a("s_lshl_b32 s81, s24, 7")
    a(f"v_lshlrev_b32 v{WT}, 2, v{AV_L31}")
    a(f"v_add_u32 v{WT}, s81, v{WT}")
    a(f"v_add_u32 v{WT}, {ST_RSTD}, v{WT}")
    a(f"ds_write_b32 v{WT}, v{AV_RSTD}")
    a(f"ds_write_b32 v{WT}, v{AV_MR} offset:512")
    a("s_waitcnt lgkmcnt(0)")

def task_zero(A):
    a = A.a
    lab = a.newlabel("Lz")
    a("s_cmp_lg_u32 s25, 0")
    a(f"s_cbranch_scc1 {lab}")
    for i in range(4): a(f"v_mov_b32 v{WT+i}, 0")
    a("s_lshl_b32 s80, s24, 11")
    a(f"buffer_store_dwordx4 {vr(WT,4)}, v{AV_L16}, s[48:51], s80 offen sc1")
    a(f"buffer_store_dwordx4 {vr(WT,4)}, v{AV_L16}, s[48:51], s80 offen offset:1024 sc1")
    a("s_waitcnt vmcnt(0)")
    a("s_lshl_b32 s80, s26, 2")
    a(f"s_add_u32 s80, s80, {DBG_KVZ*4}")
    a(f"v_mov_b32 v{AV_T}, s80")
    a(f"v_mov_b32 v{AV_T+1}, 1")
    a("s_mov_b64 exec, 1")
    a(f"buffer_atomic_add v{AV_T+1}, v{AV_T}, s[52:55], 0 offen")
    a("s_mov_b64 exec, -1")
    a.label(lab)

def task_w2_load(A):
    a = A.a
    a("s_lshl_b32 s80, s24, 8")
    a("s_add_u32 s80, s80, s2")
    a("s_mul_i32 s81, s80, 0x199a")
    a("s_lshr_b32 s81, s81, 16")
    a("s_mul_i32 s82, s81, 10")
    a("s_sub_u32 s82, s80, s82")
    a("s_mul_i32 s97, s81, 40")
    a("s_lshl_b32 s83, s82, 2")
    a("s_add_u32 s97, s97, s83")
    a("s_lshl_b32 s97, s97, 10")
    a("s_cmp_ge_u32 s80, 740")
    a("s_cselect_b32 s97, 0x7f000000, s97")
    a("s_mov_b32 s92, s56"); a("s_mov_b32 s93, s57"); a("s_mov_b32 s94, s58"); a("s_mov_b32 s95, 0x00020000")
    a("s_lshl_b32 s83, s81, 5")
    lab = a.newlabel("Lw2")
    a("s_cmp_lt_u32 s81, 20")
    a(f"s_cbranch_scc1 {lab}")
    a("s_mov_b32 s92, s60"); a("s_mov_b32 s93, s61"); a("s_mov_b32 s94, s62")
    a("s_sub_u32 s83, s83, 640")
    a.label(lab)
    a("s_mul_i32 s83, s83, 1280")
    a("s_lshl_b32 s82, s82, 7")
    a("s_add_u32 s83, s83, s82")
    a("s_cmp_ge_u32 s80, 740")
    a("s_cselect_b32 s83, 0x7f000000, s83")
    a(f"v_lshrrev_b32 v{WT}, 3, v{AV_LANE}")
    a(f"v_mul_u32_u24 v{WT}, 1280, v{WT}")
    a(f"v_and_b32 v{WT+1}, 7, v{AV_LANE}")
    a(f"v_lshlrev_b32 v{WT+1}, 4, v{WT+1}")
    a(f"v_add_u32 v{WT}, v{WT}, v{WT+1}")
    a("s_lshl_b32 s69, s24, 12")
    a(f"s_add_u32 m0, s69, {W2S}")
    for i in range(4):
        a(f"buffer_load_dwordx4 v{WT}, s[92:95], s83 offen lds")
        if i < 3:
            a("s_add_u32 m0, m0, 1024")
            a(f"s_add_u32 s83, s83, {8*1280}")
    A.w2_seq = A.vq.issue(4)

def task_w2_store(A):
    a = A.a
    A.wait_vm(A.w2_seq)
    a(f"v_lshrrev_b32 v{WT}, 5, v{AV_LANE}")
    a(f"v_lshlrev_b32 v{WT}, 4, v{WT}")
    a(f"v_bfe_u32 v{WT+1}, v{AV_LANE}, 4, 1")
    a(f"v_lshlrev_b32 v{WT+1}, 2, v{WT+1}")
    a(f"v_add_u32 v{WT}, v{WT}, v{WT+1}")
    a(f"v_bfe_u32 v{WT+1}, v{AV_LANE}, 2, 2")
    a(f"v_add_u32 v{WT}, v{WT}, v{WT+1}")
    a(f"v_lshlrev_b32 v{WT}, 7, v{WT}")
    a(f"v_and_b32 v{WT+1}, 3, v{AV_LANE}")
    a(f"v_lshlrev_b32 v{WT+1}, 3, v{WT+1}")
    a(f"v_add_u32 v{WT}, v{WT}, v{WT+1}")
    a("s_lshl_b32 s69, s24, 12")
    a(f"s_add_u32 s69, s69, {W2S}")
    a(f"v_add_u32 v{WT}, s69, v{WT}")
    for nt in range(4):
        a(f"ds_read_b64_tr_b16 {vr(WD+4*nt,2)}, v{WT} offset:{nt*32}")
        a(f"ds_read_b64_tr_b16 {vr(WD+4*nt+2,2)}, v{WT} offset:{nt*32+1024}")
    a("s_waitcnt lgkmcnt(0)")
    for nt in range(4):
        a(f"buffer_store_dwordx4 {vr(WD+4*nt,4)}, v{AV_L16}, s[44:47], s97 offen offset:{nt*1024}")
    A.vq.issue(4)

def read_tile(A, buf, dst=WD):
    a = A.a
    for q in range(4): a(f"ds_read_b128 {vr(dst+4*q,4)}, v{AV_DR} offset:{buf+q*1024}") if buf < 60000 else None
    return A.lq.issue(4)
def read_tile_hi(A, buf, dst=WD):
    a = A.a
    a(f"v_add_u32 v{AV_T}, {buf}, v{AV_DR}")
    for q in range(4): a(f"ds_read_b128 {vr(dst+4*q,4)}, v{AV_T} offset:{q*1024}")
    return A.lq.issue(4)
def read_cs(A, X, tau, dst=WC, nq=4):
    a = A.a
    for q in range(nq): a(f"ds_read_b128 {vr(dst+4*q,4)}, v{AV_CSA} offset:{X*CS_STRIDE + (32*tau+8*q)*4}")
    return A.lq.issue(nq)

def epi_sig(A, src, cs, dst):
    a = A.a
    for h in range(2):
        r = range(8 * h, 8 * h + 8)
        for i in r: a(f"v_mul_f32 v{cs+i}, v{cs+i}, v{AV_C2}")
        for i in r: a(f"v_fma_f32 v{dst+i}, v{src+i}, v{AV_C1}, v{cs+i}")
        for i in r: a(f"v_exp_f32 v{dst+i}, v{dst+i}")
        for i in r: a(f"v_add_f32 v{dst+i}, 1.0, v{dst+i}")
        for i in r: a(f"v_rcp_f32 v{dst+i}, v{dst+i}")

def epi_h(A, src, cs, sig, blk_code, blk_add):
    a = A.a
    for i in range(16): a(f"v_mul_f32 v{cs+i}, v{cs+i}, v{AV_MR}")
    for i in range(16): a(f"v_fma_f32 v{src+i}, v{src+i}, v{AV_RSTD}, -v{cs+i}")
    for i in range(16): a(f"v_mul_f32 v{src+i}, v{src+i}, v{sig+i}")
    for i in range(8): a(f"v_cvt_pk_bf16_f32 v{WT+i}, v{src+2*i}, v{src+2*i+1}")
    blk_code()
    a(f"buffer_store_dwordx4 {vr(WT,4)}, v{AV_L16}, s[40:43], s81 offen offset:{blk_add*1024} {STORE_FLAGS}")
    a(f"buffer_store_dwordx4 {vr(WT+4,4)}, v{AV_L16}, s[40:43], s81 offen offset:{(blk_add+1)*1024} {STORE_FLAGS}")
    A.vq.issue(2)
    a("s_nop 1")
STORE_FLAGS = ""

def act_base(A, blk_expr_code):
    a = A.a
    def f():
        blk_expr_code()
        a("s_lshl_b32 s81, s25, 2")
        a("s_add_u32 s81, s81, s24")
        a(f"s_mul_i32 s81, s81, {NBLK}")
        a("s_add_u32 s81, s81, s82")
        a("s_lshl_b32 s81, s81, 10")
    return f

def epi_phi(A, src, cs, nvals):
    a = A.a
    for h in range(0, nvals, 4):
        r = range(h, h + 4)
        for i in r: a(f"v_mul_f32 v{cs+i}, v{cs+i}, v{AV_MR}")
        for i in r: a(f"v_fma_f32 v{src+i}, v{src+i}, v{AV_RSTD}, -v{cs+i}")
        phi4(a, [src + i for i in r], [cs + i for i in r])

def phi4(a, vals, tmps):
    for v, t in zip(vals, tmps): a(f"v_mul_f32 v{t}, s98, v{v}")
    for k, v in enumerate(vals): a(f"v_cmp_lt_f32 s[{56+2*k}:{57+2*k}], 0, v{v}")
    for v, t in zip(vals, tmps): a(f"v_exp_f32 v{t}, v{t}")
    for v in vals: a(f"v_add_f32 v{v}, 1.0, v{v}")
    for k, (v, t) in enumerate(zip(vals, tmps)): a(f"v_cndmask_b32 v{v}, v{t}, v{v}, s[{56+2*k}:{57+2*k}]")
    for v in vals: a(f"v_add_f32 v{v}, s99, v{v}")

RS, MRS = 176, 192
PKF = 128
VF = 152
def kv_load_stats(A):
    a = A.a
    a("s_lshl_b32 s80, s24, 7")
    a(f"v_lshlrev_b32 v{AV_T}, 4, v{AV_HF}")
    a(f"v_add_u32 v{AV_T}, s80, v{AV_T}")
    a(f"v_add_u32 v{AV_T}, {ST_RSTD}, v{AV_T}")
    for q in range(4):
        a(f"ds_read_b128 {vr(RS+4*q,4)}, v{AV_T} offset:{q*32}")
        a(f"ds_read_b128 {vr(MRS+4*q,4)}, v{AV_T} offset:{512+q*32}")
    A.lq.issue(8)
    a("s_waitcnt lgkmcnt(0)")

def kv_epi_tile(A, X, tau, kind, dstf):
    a = A.a
    cs = WC
    a(f"v_lshlrev_b32 v{AV_T}, 2, v{AV_L31}")
    a(f"v_add_u32 v{AV_T}, {CS + X*CS_STRIDE + 32*tau*4}, v{AV_T}")
    a(f"ds_read_b32 v{cs}, v{AV_T}")
    a("s_waitcnt lgkmcnt(0)")
    for i in range(16): a(f"v_mul_f32 v{WT+i}, v{cs}, v{MRS+i}")
    for i in range(16): a(f"v_fma_f32 v{WD+i}, v{WD+i}, v{RS+i}, -v{WT+i}")
    if kind != "v":
        if kind == "kv":
            for i in range(16): a(f"v_mov_b32 v{WC+1+i if i < 15 else W2+40}, v{WD+i}") if False else None
            for i in range(16): a(f"v_mov_b32 v{208+i}, v{WD+i}")
        for h in range(0, 16, 4):
            phi4(a, [WD + h + i for i in range(4)], [WT + h + i for i in range(4)])
        if kind == "kv":
            a(f"v_cmp_gt_u32 vcc, 16, v{AV_L31}")
            a("s_nop 1")
            for i in range(16): a(f"v_cndmask_b32 v{WD+i}, v{208+i}, v{WD+i}, vcc")
    for i in range(8): a(f"v_cvt_pk_bf16_f32 v{dstf+i}, v{WD+2*i}, v{WD+2*i+1}")
    if kind != "v":
        a(f"v_add_f32 v{WT}, v{WD}, v{WD+1}")
        a(f"v_add_f32 v{WT+1}, v{WD+2}, v{WD+3}")
        for i in range(4, 16, 2):
            a(f"v_add_f32 v{WT}, v{WT}, v{WD+i}")
            a(f"v_add_f32 v{WT+1}, v{WT+1}, v{WD+i+1}")
        a(f"v_add_f32 v{WT}, v{WT}, v{WT+1}")
        a(f"v_lshlrev_b32 v{AV_T}, 2, v{AV_L31}")
        a(f"v_add_u32 v{AV_T}, {ZL + 128*tau}, v{AV_T}")
        a(f"ds_add_f32 v{AV_T}, v{WT}")
        A.lq.issue(1)

def frag_addr(idx):
    return FRA + idx * 1024 if idx < 32 else FRB + (idx - 32) * 1024

def kv_write_frags(A):
    a = A.a
    a("s_lshl_b32 s80, s24, 10")
    a(f"v_add_u32 v{AV_T}, s80, v{AV_L16}")
    a(f"v_add_u32 v{AV_T+1}, {FRB}, v{AV_T}")
    for tile in range(5):
        for blk in range(2):
            src = (PKF + 8 * tile if tile < 3 else VF + 8 * (tile - 3)) + 4 * blk
            idx = (tile * 2 + blk) * 4
            if idx < 32: a(f"ds_write_b128 v{AV_T}, {vr(src,4)} offset:{FRA + idx*1024}")
            else: a(f"ds_write_b128 v{AV_T+1}, {vr(src,4)} offset:{(idx-32)*1024}")
    a("s_waitcnt lgkmcnt(0)")

PRODS = [[(0, 3), (1, 2)], [(0, 4), (2, 4)], [(1, 3), (2, 2)], [(1, 4), None]]
def kv_products(A):
    a = A.a
    for w in range(4):
        lab = a.newlabel("Lkp")
        a(f"s_cmp_lg_u32 s24, {w}")
        a(f"s_cbranch_scc1 {lab}")
        for pi, pr in enumerate(PRODS[w]):
            if pr is None: continue
            dt, et = pr
            D = 64 + 16 * pi
            first = True
            for sw in range(4):
                for blk in range(2):
                    ia = (dt * 2 + blk) * 4 + sw; ib = (et * 2 + blk) * 4 + sw
                    for idx, dst in ((ia, 96), (ib, 100)):
                        ad = frag_addr(idx)
                        if ad < 65536: a(f"ds_read_b128 {vr(dst,4)}, v{AV_L16} offset:{ad}")
                        else:
                            a(f"v_add_u32 v{AV_T}, {ad}, v{AV_L16}")
                            a(f"ds_read_b128 {vr(dst,4)}, v{AV_T}")
                    a("s_waitcnt lgkmcnt(0)")
                    c = "0" if first else vr(D, 16)
                    a(f"v_mfma_f32_32x32x16_bf16 {vr(D,16)}, {vr(96,4)}, {vr(100,4)}, {c}")
                    first = False
                    a("s_nop 3")
        a.label(lab)
    a("s_nop 7"); a("s_nop 7")

def kv_scatter(A):
    a = A.a
    for w in range(4):
        lab = a.newlabel("Lks")
        a(f"s_cmp_lg_u32 s24, {w}")
        a(f"s_cbranch_scc1 {lab}")
        for pi, pr in enumerate(PRODS[w]):
            if pr is None: continue
            dt, et = pr
            D = 64 + 16 * pi
            eg, he, er, dd, ad, tm = 104, 105, 106, 107, 108, 109
            add = {3: 0, 4: 32, 2: 48}[et]
            a(f"v_add_u32 v{eg}, {add}, v{AV_L31}")
            a(f"v_mul_u32_u24 v{he}, 205, v{eg}")
            a(f"v_lshrrev_b32 v{he}, 12, v{he}")
            a(f"v_mul_u32_u24 v{tm}, 20, v{he}")
            a(f"v_sub_u32 v{er}, v{eg}, v{tm}")
            a(f"v_lshlrev_b32 v{dd}, 2, v{AV_HF}")
            a(f"v_add_u32 v{dd}, {32*dt}, v{dd}")
            a(f"v_mul_u32_u24 v{ad}, 80, v{dd}")
            a(f"v_lshlrev_b32 v{er}, 2, v{er}")
            a(f"v_add_u32 v{ad}, v{ad}, v{er}")
            a(f"v_add_u32 v{ad}, {KVC}, v{ad}")
            a(f"v_sub_u32 v{dd}, v{dd}, v{tm}")
            if et == 2:
                a(f"v_cmp_gt_u32 vcc, 16, v{AV_L31}")
                a(f"v_mov_b32 v{tm}, 0x1000")
                a("s_nop 0")
                a(f"v_cndmask_b32 v{dd}, v{dd}, v{tm}, vcc")
            for r in range(16 if dt < 2 else 8):
                cr = 8 * (r >> 2) + (r & 3)
                a(f"v_add_u32 v{tm}, {cr}, v{dd}")
                a(f"v_cmpx_gt_u32 vcc, 20, v{tm}")
                a(f"ds_write_b32 v{ad}, v{D+r} offset:{cr*80}")
                a("s_mov_b64 exec, -1")
        a.label(lab)
    lab = a.newlabel("Lkz")
    a("s_cmp_lg_u32 s24, 3")
    a(f"s_cbranch_scc1 {lab}")
    for rnd in range(3):
        a(f"v_add_u32 v{104}, {64*rnd}, v{AV_LANE}")
        a(f"v_lshlrev_b32 v{105}, 2, v{104}")
        a(f"v_add_u32 v{106}, {ZL}, v{105}")
        a(f"ds_read_b32 v{107}, v{106}")
        a(f"v_cmp_gt_u32 vcc, 80, v{104}")
        a("s_waitcnt lgkmcnt(0)")
        a(f"v_cndmask_b32 v{107}, 0, v{107}, vcc")
        a(f"v_add_u32 v{105}, {KVC + 6400}, v{105}")
        a(f"ds_write_b32 v{105}, v{107}")
    a.label(lab)
    a("s_waitcnt lgkmcnt(0)")

def kv_atomics(A):
    a = A.a
    a("s_lshl_b32 s80, s24, 8")
    a(f"v_lshlrev_b32 v{AV_T}, 2, v{AV_LANE}")
    a(f"v_add_u32 v{AV_T}, s80, v{AV_T}")
    a(f"v_add_u32 v{AV_T+1}, {KVC}, v{AV_T}")
    for m in range(7): a(f"ds_read_b32 v{WD+m}, v{AV_T+1} offset:{m*1024}")
    a("s_waitcnt lgkmcnt(0)")
    poll(A, lambda: (a("s_lshl_b32 s80, s26, 2"), a(f"s_add_u32 s80, s80, {DBG_KVZ*4}")), 4)
    a("s_lshl_b32 s80, s24, 8")
    a(f"v_lshlrev_b32 v{AV_T}, 2, v{AV_LANE}")
    a(f"v_add_u32 v{AV_T}, s80, v{AV_T}")
    for m in range(7):
        a(f"s_mov_b32 s80, {m*1024}")
        a(f"buffer_atomic_add_f32 v{WD+m}, v{AV_T}, s[48:51], s80 offen")
    A.kv_at = A.vq.issue(7)

def o_fetch(A):
    a = A.a
    poll(A, lambda: (a("s_lshl_b32 s80, s26, 2"), a(f"s_add_u32 s80, s80, {DBG_KVD*4}")), 64)
    a("s_mul_i32 s80, s24, 1792")
    a(f"v_add_u32 v{AV_T}, s80, v{AV_L16}")
    a(f"buffer_load_dwordx4 {vr(WD,4)}, v{AV_T}, s[48:51], 0 offen sc1")
    a(f"buffer_load_dwordx4 {vr(WD+4,4)}, v{AV_T}, s[48:51], 0 offen offset:1024 sc1")
    a("s_waitcnt vmcnt(0)")
    a(f"v_add_u32 v{AV_T}, {KVC}, v{AV_T}")
    a(f"ds_write_b128 v{AV_T}, {vr(WD,4)}")
    a(f"s_mov_b32 s80, -1"); a("s_mov_b32 s81, 0xffff")
    a("s_mov_b64 exec, s[80:81]")
    a(f"ds_write_b128 v{AV_T}, {vr(WD+4,4)} offset:1024")
    a("s_mov_b64 exec, -1")
    a("s_waitcnt lgkmcnt(0)")

OFR = [(0, 0), (0, 1), (0, 2), (1, 1), (1, 2), (1, 3), (1, 4), (2, 3), (2, 4)]
def o_build(A):
    a = A.a
    for w in range(4):
        lab = a.newlabel("Lob")
        a(f"s_cmp_lg_u32 s24, {w}")
        a(f"s_cbranch_scc1 {lab}")
        for i, (et, db) in enumerate(OFR):
            if i % 4 != w: continue
            eg, he, er, dd, ad, tm, zd = 104, 105, 106, 107, 108, 109, 110
            a(f"v_add_u32 v{eg}, {32*et}, v{AV_L31}")
            a(f"v_mul_u32_u24 v{he}, 205, v{eg}")
            a(f"v_lshrrev_b32 v{he}, 12, v{he}")
            a(f"v_mul_u32_u24 v{tm}, 20, v{he}")
            a(f"v_sub_u32 v{er}, v{eg}, v{tm}")
            a(f"v_lshlrev_b32 v{dd}, 2, v{AV_HF}")
            a(f"v_mul_u32_u24 v{ad}, 80, v{dd}")
            a(f"v_lshlrev_b32 v{er}, 2, v{er}")
            a(f"v_add_u32 v{ad}, v{ad}, v{er}")
            a(f"v_add_u32 v{ad}, {KVC}, v{ad}")
            a(f"v_lshlrev_b32 v{zd}, 2, v{dd}")
            a(f"v_add_u32 v{zd}, {KVC + 6400}, v{zd}")
            a(f"v_sub_u32 v{dd}, v{dd}, v{tm}")
            if et == 2:
                a(f"v_cmp_gt_u32 vcc, 16, v{AV_L31}")
                a(f"v_mov_b32 v{tm}, 0x1000")
                a("s_nop 0")
                a(f"v_cndmask_b32 v{dd}, v{tm}, v{dd}, vcc")
            for jj in range(8):
                cj = (jj & 3) + 8 * (jj >> 2)
                d0 = 16 * db + cj
                a(f"ds_read_b32 v{64+jj}, v{ad} offset:{d0*80}")
                a(f"ds_read_b32 v{72+jj}, v{zd} offset:{d0*4}")
            a("s_waitcnt lgkmcnt(0)")
            for jj in range(8):
                cj = (jj & 3) + 8 * (jj >> 2)
                d0 = 16 * db + cj
                a(f"v_add_u32 v{tm}, {d0}, v{dd}")
                a(f"v_cmp_gt_u32 vcc, 20, v{tm}")
                a("s_nop 1")
                a(f"v_cndmask_b32 v{64+jj}, 0, v{64+jj}, vcc")
                a(f"v_cndmask_b32 v{72+jj}, 0, v{72+jj}, vcc")
            for p in range(4):
                a(f"v_cvt_pk_bf16_f32 v{80+p}, v{64+2*p}, v{64+2*p+1}")
                a(f"v_cvt_pk_bf16_f32 v{84+p}, v{72+2*p}, v{72+2*p+1}")
            a(f"ds_write_b128 v{AV_L16}, {vr(80,4)} offset:{KVF + i*1024}")
            a(f"ds_write_b128 v{AV_L16}, {vr(84,4)} offset:{KVF + (9+i)*1024}")
        a.label(lab)
    a("s_waitcnt lgkmcnt(0)")

def o_compute(A):
    a = A.a
    for et in range(3):
        idxs = [i for i, (e, db) in enumerate(OFR) if e == et]
        N, Dn = 64, 80
        for k, i in enumerate(idxs):
            db = OFR[i][1]
            a(f"ds_read_b128 {vr(96,4)}, v{AV_L16} offset:{KVF + i*1024}")
            a(f"ds_read_b128 {vr(100,4)}, v{AV_L16} offset:{KVF + (9+i)*1024}")
            a("s_waitcnt lgkmcnt(0)")
            cn = "0" if k == 0 else vr(N, 16); cd = "0" if k == 0 else vr(Dn, 16)
            a(f"v_mfma_f32_32x32x16_bf16 {vr(N,16)}, {vr(96,4)}, {vr(PQ+4*db,4)}, {cn}")
            a(f"v_mfma_f32_32x32x16_bf16 {vr(Dn,16)}, {vr(100,4)}, {vr(PQ+4*db,4)}, {cd}")
            a("s_nop 3")
        a("s_nop 7"); a("s_nop 7")
        nv = 16 if et < 2 else 8
        for i in range(nv): a(f"v_add_f32 v{Dn+i}, s99, v{Dn+i}")
        for i in range(nv): a(f"v_rcp_f32 v{Dn+i}, v{Dn+i}")
        a("s_nop 0")
        for i in range(nv): a(f"v_mul_f32 v{N+i}, v{N+i}, v{Dn+i}")
        for i in range(nv // 2): a(f"v_cvt_pk_bf16_f32 v{104+i}, v{N+2*i}, v{N+2*i+1}")
        act_base(A, lambda: a("s_mul_i32 s82, s26, 5"))()
        if et == 2: a("s_add_u32 s81, s81, 4096")
        a(f"buffer_store_dwordx4 {vr(104,4)}, v{AV_L16}, s[40:43], s81 offen offset:{(2*et*1024) % 4096} {STORE_FLAGS}")
        A.vq.issue(1)
        if et < 2:
            a(f"buffer_store_dwordx4 {vr(108,4)}, v{AV_L16}, s[40:43], s81 offen offset:{(2*et+1)*1024} {STORE_FLAGS}")
            A.vq.issue(1)
        a("s_nop 1")

def gen_aux(a, typ):
    A = Aux(a, typ)
    aux_setup(a, typ)
    a(f"s_mov_b32 s98, {fbits(1.4426950408889634)}")
    a(f"s_mov_b32 s99, {fbits(1e-6)}")
    nxt = [0]
    def issue_upto(lim, k):
        while nxt[0] <= min(lim, 24) and A.earliest[nxt[0]] <= k:
            A.issue_stage(nxt[0]); nxt[0] += 1
    tasks = {k: [] for k in range(27)}
    def at(k, f): tasks[k].append(f)
    idx_stats = lambda: (a("s_lshl_b32 s80, s25, 2"), a(f"s_add_u32 s80, s80, {DBG_STATS*4}"))
    at(1, lambda: task_stats_compute(A))
    at(2, lambda: task_cs_compute(A))
    at(2, lambda: signal(A, A.st_store, idx_stats, "stats"))
    at(3, lambda: task_cs_store(A))
    at(3, lambda: task_w2_store(A))
    def zero_z():
        a(f"v_lshlrev_b32 v{AV_T}, 2, v{AV_LANE}")
        a(f"v_add_u32 v{AV_T}, {ZL}, v{AV_T}")
        a(f"v_mov_b32 v{AV_T+1}, 0")
        a(f"ds_write_b32 v{AV_T}, v{AV_T+1}")
        a(f"ds_write_b32 v{AV_T}, v{AV_T+1} offset:256")
        a("s_waitcnt lgkmcnt(0)")
    at(6, lambda: (poll(A, idx_stats, 64), task_stats_fetch(A), poll_cs(A), task_cs_fetch(A)))
    def sw_tile(buf, X, tau, fn, hi=False, nq=4):
        def f():
            s1 = (read_tile_hi if hi else read_tile)(A, buf)
            s2 = read_cs(A, X, tau, nq=nq)
            a("s_waitcnt lgkmcnt(0)")
            fn()
        return f
    def pq_pack(nblk, dst):
        for i in range(4 * nblk): a(f"v_cvt_pk_bf16_f32 v{dst+i}, v{WD+2*i}, v{WD+2*i+1}")
    def gu_pair(Xg, pair_blk_code, k0):
        pass
    if typ == "Q":
        at(7, sw_tile(EBUF, 0, 2, lambda: (epi_phi(A, WD, WC, 8), pq_pack(1, PQ + 16)), nq=2))
        at(8, sw_tile(T0BUF, 0, 0, lambda: (epi_phi(A, WD, WC, 16), pq_pack(2, PQ))))
        at(10, sw_tile(T1BUF, 0, 1, lambda: (epi_phi(A, WD, WC, 16), pq_pack(2, PQ + 8))))
        blk0 = act_base(A, lambda: (a("s_lshl_b32 s82, s26, 3"), a("s_add_u32 s82, s82, 40")))
        blk1 = act_base(A, lambda: (a("s_lshl_b32 s82, s26, 3"), a("s_add_u32 s82, s82, 44")))
        at(13, sw_tile(T0BUF, 1, 0, lambda: epi_sig(A, WD, WC, SIG)))
        at(15, sw_tile(T1BUF, 1, 1, lambda: epi_sig(A, WD, WC, SIG + 16)))
        at(18, sw_tile(T0BUF, 2, 0, lambda: epi_h(A, WD, WC, SIG, blk0, 0)))
        at(20, sw_tile(T1BUF, 2, 1, lambda: epi_h(A, WD, WC, SIG + 16, blk0, 2)))
        at(23, sw_tile(T0BUF, 3, 0, lambda: epi_sig(A, WD, WC, SIG)))
        at(25, sw_tile(T1BUF, 3, 1, lambda: epi_sig(A, WD, WC, SIG + 16)))
        at(21, lambda: o_fetch(A))
        at(22, lambda: o_build(A))
        at(24, lambda: o_compute(A))
        p0, p1 = last_dump_pos(5)
        at(26, sw_tile(p0, 4, 0, lambda: epi_h(A, WD, WC, SIG, blk1, 0), hi=True))
        at(26, sw_tile(p1, 4, 1, lambda: epi_h(A, WD, WC, SIG + 16, blk1, 2), hi=True))
    else:
        at(1, lambda: task_zero(A))
        at(5, zero_z)
        def kt(buf, X, tau, kind, dst):
            def f():
                read_tile(A, buf); a("s_waitcnt lgkmcnt(0)")
                kv_epi_tile(A, X, tau, kind, dst)
            return f
        at(7, lambda: kv_load_stats(A))
        at(7, kt(EBUF, 0, 2, "kv", PKF + 16))
        at(8, kt(T0BUF, 0, 0, "k", PKF))
        at(10, kt(T1BUF, 0, 1, "k", PKF + 8))
        at(12, kt(T0BUF, 1, 0, "v", VF))
        at(12, kt(T1BUF, 1, 1, "v", VF + 8))
        at(12, lambda: kv_write_frags(A))
        at(13, lambda: kv_products(A))
        at(14, lambda: kv_scatter(A))
        at(15, lambda: kv_atomics(A))
        idx_kvd = lambda: (a("s_lshl_b32 s80, s26, 2"), a(f"s_add_u32 s80, s80, {DBG_KVD*4}"))
        at(16, lambda: signal(A, A.kv_at, idx_kvd, "kvd"))
        blk0 = act_base(A, lambda: (a("s_lshl_b32 s82, s26, 2"), a("s_add_u32 s82, s82, 104")))
        def blkh_code():
            a("s_lshl_b32 s82, s26, 1"); a("s_add_u32 s82, s82, 136")
            a("s_cmp_ge_u32 s26, 6")
            a("s_cselect_b32 s82, 0x100000, s82")
        blkh = act_base(A, blkh_code)
        at(18, sw_tile(T0BUF, 2, 0, lambda: epi_sig(A, WD, WC, SIG)))
        at(20, sw_tile(T1BUF, 2, 1, lambda: epi_sig(A, WD, WC, SIG + 16)))
        at(23, sw_tile(T0BUF, 3, 0, lambda: epi_h(A, WD, WC, SIG, blk0, 0)))
        at(25, sw_tile(T1BUF, 3, 1, lambda: epi_h(A, WD, WC, SIG + 16, blk0, 2)))
        p0, p1 = last_dump_pos(5)
        at(26, sw_tile(p0, 4, 0, lambda: epi_sig(A, WD, WC, SIG), hi=True))
        at(26, sw_tile(p1, 4, 1, lambda: epi_h(A, WD, WC, SIG, blkh, 0), hi=True))
    issue_upto(1, 0)
    task_stats_load(A); task_cs_load(A); task_w2_load(A)
    issue_upto(2, 0)
    A.wait_vm(A.stage_seq[0])
    a("s_barrier")
    for k in range(1, 27):
        issue_upto(k + 2, k)
        for f in tasks[k]: f()
        if k <= 24: A.wait_vm(A.stage_seq[k])
        if k <= 25: a("s_barrier")

def gen_front(name="front_kernel", stamp=0, mapv=0):
    a = Asm(); a.L.append(head(name))
    if stamp: a("s_memrealtime s[100:101]")
    a("s_cmp_ge_u32 s2, 256")
    a(f"s_cbranch_scc1 {name}_end")
    a("s_load_dwordx4 s[4:7], s[0:1], 0")
    a("s_load_dwordx2 s[8:9], s[0:1], 16")
    a("s_load_dwordx4 s[12:15], s[0:1], 32")
    a("s_load_dwordx2 s[16:17], s[0:1], 48")
    a("s_load_dwordx4 s[20:23], s[0:1], 64")
    a("v_lshrrev_b32 v1, 6, v0")
    a("s_and_b32 s83, s2, 7")
    a("v_readfirstlane_b32 s3, v1")
    a("s_lshr_b32 s84, s2, 3")
    if mapv == 0:
        a("s_and_b32 s25, s83, 1"); a("s_lshl_b32 s25, s25, 3"); a("s_and_b32 s85, s84, 7"); a("s_add_u32 s25, s25, s85")
        a("s_lshr_b32 s85, s83, 1"); a("s_lshr_b32 s86, s84, 3")
        a("s_lshr_b32 s27, s86, 1")
        a("s_lshl_b32 s26, s85, 1"); a("s_and_b32 s86, s86, 1"); a("s_add_u32 s26, s26, s86")
    else:
        a("s_and_b32 s25, s83, 3"); a("s_lshl_b32 s25, s25, 2"); a("s_and_b32 s85, s84, 3"); a("s_add_u32 s25, s25, s85")
        a("s_lshr_b32 s85, s83, 2"); a("s_lshr_b32 s86, s84, 2")
        a("s_lshr_b32 s27, s86, 2")
        a("s_lshl_b32 s26, s85, 2"); a("s_and_b32 s86, s86, 3"); a("s_add_u32 s26, s26, s86")
    a("s_lshl_b32 s19, s27, 3")
    a("s_add_u32 s19, s19, s26")
    a("s_and_b32 s24, s3, 3")
    a("s_cmp_ge_u32 s3, 4")
    a(f"s_cbranch_scc1 {name}_aux")
    def fin_stamp():
        if stamp:
            a("s_waitcnt vmcnt(0) lgkmcnt(0)")
            a("s_memrealtime s[92:93]")
            a("s_waitcnt lgkmcnt(0)")
            a(f"s_add_u32 s64, s22, {WS_STAMP}"); a("s_addc_u32 s65, s23, 0"); a("s_mov_b32 s66, 65536"); a("s_mov_b32 s67, 0x00020000")
            a("s_lshl_b32 s94, s2, 3"); a("s_add_u32 s94, s94, s3"); a("s_lshl_b32 s94, s94, 4")
            a("v_mov_b32 v0, s100"); a("v_mov_b32 v1, s101"); a("v_mov_b32 v2, s92"); a("v_mov_b32 v3, s93"); a("v_mov_b32 v4, s94")
            a("s_mov_b64 exec, 1")
            a("buffer_store_dwordx4 v[0:3], v4, s[64:67], 0 offen")
    a("s_waitcnt lgkmcnt(0)")
    compute_setup(a)
    a("s_setprio 3")
    a("s_cmp_eq_u32 s27, 1")
    a(f"s_cbranch_scc1 {name}_ckv")
    for typ in ("Q", "KV"):
        if typ == "KV": a.label(f"{name}_ckv")
        gen_compute(a, typ, 5)
        fin_stamp()
        a("s_endpgm")
    a.label(f"{name}_aux")
    a("s_waitcnt lgkmcnt(0)")
    srd(a, 28, 6, 7, D * 3 * D * 2)
    srd(a, 32, 12, 13, D * F * 2)
    srd(a, 36, 14, 15, D * F * 2)
    srd(a, 40, 22, 23, ACT_BYTES, WS_ACT)
    srd(a, 44, 22, 23, W2P_BYTES, WS_W2P)
    a("s_lshl_b32 s69, s26, 13")
    a(f"s_add_u32 s69, s69, {WS_KV}")
    a("s_add_u32 s48, s22, s69"); a("s_addc_u32 s49, s23, 0"); a(f"s_mov_b32 s50, {KV_STRIDE}"); a("s_mov_b32 s51, 0x00020000")
    srd(a, 52, 20, 21, 256)
    srd(a, 56, 8, 9, D * D * 2)
    srd(a, 60, 16, 17, F * D * 2)
    srd(a, 72, 4, 5, S * D * 2)
    srd(a, 84, 22, 23, STATS_BYTES, WS_STATS)
    srd(a, 88, 22, 23, CSP_BYTES, WS_CSP)
    a("s_cmp_eq_u32 s27, 1")
    a(f"s_cbranch_scc1 {name}_akv")
    for typ in ("Q", "KV"):
        if typ == "KV": a.label(f"{name}_akv")
        gen_aux(a, typ)
        fin_stamp()
        a("s_endpgm")
    a.label(f"{name}_end")
    a("s_endpgm")
    return a.text() + kd(name, 256, 256), LDS_BYTES
```

```python
from asmlib import *
from layout import *

def gen_final(name="final_kernel", stamp=False, mapv=0):
    a = Asm()
    a.L.append(head(name))
    if stamp: a("s_memrealtime s[90:91]")
    if stamp == 2: a('s_memtime s[58:59]')
    DEP = 5
    NSLOT = 19
    a("s_cmp_ge_u32 s2, 256")
    a(f"s_cbranch_scc1 {name}_end")
    a("s_load_dwordx2 s[4:5], s[0:1], 0")
    a("s_load_dwordx2 s[6:7], s[0:1], 56")
    a("s_load_dwordx2 s[8:9], s[0:1], 72")
    a("v_and_b32 v1, 63, v0")
    a("v_lshrrev_b32 v2, 6, v0")
    a("v_and_b32 v3, 15, v1")
    a("v_readfirstlane_b32 s20, v2")
    a("v_lshrrev_b32 v4, 4, v1")
    a("s_and_b32 s21, s2, 7")
    a("s_lshr_b32 s22, s2, 3")
    a("s_lshr_b32 s23, s21, 1")
    a("s_lshl_b32 s23, s23, 3")
    a("s_lshr_b32 s24, s22, 2")
    a("s_add_u32 s23, s23, s24")
    a("s_and_b32 s24, s21, 1")
    a("s_lshl_b32 s24, s24, 2")
    a("s_and_b32 s25, s22, 3")
    a("s_add_u32 s24, s24, s25")
    if mapv == 1:
        a("s_mov_b32 s23, 0"); a("s_mov_b32 s24, 0")
    elif mapv == 2:
        a("s_lshl_b32 s23, s21, 2"); a("s_lshr_b32 s24, s22, 3"); a("s_add_u32 s23, s23, s24"); a("s_and_b32 s24, s22, 7")
    elif mapv == 3:
        a("s_mov_b32 s23, s22"); a("s_mov_b32 s24, s21")
    elif mapv == 4:
        a("s_mov_b32 s23, s21"); a("s_and_b32 s24, s22, 7")
    a("v_lshrrev_b32 v5, 1, v4")
    a("v_lshlrev_b32 v5, 10, v5")
    a("v_and_b32 v6, 1, v4")
    a("v_lshlrev_b32 v6, 9, v6")
    a("v_add_u32 v5, v5, v6")
    a("v_lshlrev_b32 v6, 4, v3")
    a("v_add_u32 v5, v5, v6")
    a("v_lshlrev_b32 v6, 4, v1")
    a("v_add_u32 v7, 0x1000, v6")
    a(f"s_mul_i32 s26, s23, {2*NBLK*1024}")
    a("s_lshl_b32 s29, s20, 11")
    a("s_add_u32 s26, s26, s29")
    a(f"s_add_u32 s27, s26, {NBLK*1024}")
    a("s_mul_i32 s28, s24, 5120")
    a("s_mul_i32 s29, s20, 40960")
    a("s_add_u32 s28, s28, s29")
    for p in range(3):
        a(f"v_add_u32 v14, {256*p}, v0")
        a("v_mul_u32_u24 v15, 205, v14")
        a("v_lshrrev_b32 v15, 11, v15")
        a("v_mul_u32_u24 v16, 10, v15")
        a("v_sub_u32 v16, v14, v16")
        a(f"v_mul_u32_u24 v17, 336, v15")
        a(f"v_lshlrev_b32 v18, 5, v16")
        a(f"v_add_u32 v{11+p}, v17, v18")
        a(f"v_mul_u32_u24 v17, 1280, v15")
        a(f"v_lshlrev_b32 v18, 4, v16")
        a(f"v_add_u32 v{8+p}, v17, v18")
    a(f"s_mul_i32 s30, s23, {64*1280}")
    a("s_mul_i32 s31, s24, 160")
    a("s_add_u32 s30, s30, s31")
    a("s_waitcnt lgkmcnt(0)")
    srd(a, 32, 8, 9, ACT_BYTES, WS_ACT)
    srd(a, 36, 8, 9, W2P_BYTES, WS_W2P)
    srd(a, 40, 4, 5, S * D * 2)
    srd(a, 44, 6, 7, S * D * 2)
    FB = 32
    def Wf(k, j): return FB + 36 * k + 4 * j
    def Af(k, i): return FB + 36 * k + 20 + 4 * i
    def loadW(k, j):
        if j < 4: a(f"buffer_load_dwordx4 {vr(Wf(k,j),4)}, v6, s[36:39], s28 offen offset:{j*1024}")
        else: a(f"buffer_load_dwordx4 {vr(Wf(k,j),4)}, v7, s[36:39], s28 offen")
    def loadA(k, i):
        so = "s26" if i < 2 else "s27"
        a(f"buffer_load_dwordx4 {vr(Af(k,i),4)}, v5, s[32:35], {so} offen offset:{(i&1)*256}")
    def adv():
        a("s_add_u32 s26, s26, 8192")
        a("s_add_u32 s27, s27, 8192")
        a(f"s_add_u32 s28, s28, {4*40960}")
    for k in range(DEP):
        for j in range(4): loadW(k, j)
        for i in range(4): loadA(k, i)
        loadW(k, 4)
        adv()
    a("v_cmp_gt_u32 vcc, 128, v0")
    a("v_mov_b32 v14, 0x7fffff00")
    a("s_nop 1")
    a("v_cndmask_b32 v10, v14, v10, vcc")
    for p in range(3):
        a(f"buffer_load_dwordx4 {vr(20+4*p,4)}, v{8+p}, s[40:43], s30 offen")
    if stamp == 2: a('s_memtime s[60:61]')
    for r in range(80):
        a(f"v_accvgpr_write_b32 a{r}, 0")
    def block(k, loads, vm):
        a(f"s_waitcnt vmcnt({vm})")
        for j in range(5):
            for i in range(4):
                acc = ar(4 * (i * 5 + j), 4)
                a(f"v_mfma_f32_16x16x32_bf16 {acc}, {vr(Wf(k,j),4)}, {vr(Af(k,i),4)}, {acc}")
                if loads and j == 4: loadA(k, i)
            if loads: loadW(k, j)
        if loads: adv()
    a("s_mov_b32 s34, s34")
    a.L.pop()
    for k in range(5):
        block(k, True, 36 + 3)
        if stamp == 2 and k == 0: a('s_memtime s[62:63]')
    if stamp == 2: a('s_memtime s[64:65]')
    for k in range(5): block(k, True, 36)
    for k in range(4):
        if k == 3:
            a("s_cmp_ge_u32 s20, 2")
            a("s_cselect_b32 s26, 0x7ff00000, s26")
            a("s_cselect_b32 s27, 0x7ff00000, s27")
            a("s_cselect_b32 s28, 0x7ff00000, s28")
        block(k, True, 36)
    block(4, False, 36)
    block(0, False, 27); block(1, False, 18); block(2, False, 9); block(3, False, 0)
    if stamp == 2: a('s_memtime s[66:67]')
    a("v_mul_u32_u24 v14, 336, v3")
    a("v_lshlrev_b32 v15, 4, v4")
    a("v_add_u32 v14, v14, v15")
    a("s_mul_i32 s29, s20, 21504")
    a("v_add_u32 v14, s29, v14")
    a("s_nop 7")
    for i in range(4):
        for j in range(5):
            a(f"ds_write_b128 v14, {ar(4*(i*5+j),4)} offset:{i*5376+j*64}")
    a("s_waitcnt lgkmcnt(0)")
    a("s_barrier")
    def fin(p):
        b = 40
        for w in range(4):
            a(f"ds_read_b128 {vr(b+8*w,4)}, v{11+p} offset:{w*21504}")
            a(f"ds_read_b128 {vr(b+8*w+4,4)}, v{11+p} offset:{w*21504+16}")
        xb = 20 + 4 * p
        for q in range(4):
            a(f"v_lshlrev_b32 v{80+2*q}, 16, v{xb+q}")
            a(f"v_and_b32 v{81+2*q}, 0xffff0000, v{xb+q}")
        a("s_waitcnt lgkmcnt(4)")
        for e in range(8): a(f"v_add_f32 v{b+e}, v{b+e}, v{b+8+e}")
        a("s_waitcnt lgkmcnt(0)")
        for e in range(8): a(f"v_add_f32 v{b+16+e}, v{b+16+e}, v{b+24+e}")
        for e in range(8): a(f"v_add_f32 v{b+e}, v{b+e}, v{80+e}")
        for e in range(8): a(f"v_add_f32 v{b+e}, v{b+e}, v{b+16+e}")
        for q in range(4): a(f"v_cvt_pk_bf16_f32 v{88+q}, v{b+2*q}, v{b+2*q+1}")
        a(f"buffer_store_dwordx4 {vr(88,4)}, v{8+p}, s[44:47], s30 offen")
        a("s_nop 1")
    if stamp == 2: a('s_memtime s[68:69]')
    fin(0); fin(1)
    a("s_cmp_ge_u32 s20, 2")
    a(f"s_cbranch_scc1 {name}_done")
    fin(2)
    a.label(f"{name}_done")
    if stamp == 2:
        a("s_memtime s[70:71]")
        a("s_waitcnt vmcnt(0) lgkmcnt(0)")
        a(f"s_add_u32 s96, s8, {WS_STAMP}")
        a(f"s_addc_u32 s97, s9, 0")
        a("s_mov_b32 s98, 65536")
        a("s_mov_b32 s99, 0x00020000")
        a(f"s_mul_i32 s94, s2, 4")
        a(f"s_add_u32 s94, s94, s20")
        a("s_lshl_b32 s94, s94, 5")
        for i in range(6):
            a(f"s_sub_u32 s95, s{60+2*i}, s58")
            a(f"v_mov_b32 v{i}, s95")
        a("v_mov_b32 v8, s94")
        a("s_mov_b64 exec, 1")
        a("buffer_store_dwordx4 v[0:3], v8, s[96:99], 0 offen")
        a("buffer_store_dwordx2 v[4:5], v8, s[96:99], 0 offen offset:16")
    elif stamp:
        stamp_out(a, 8, 9, 4, "s20", slot=1)
    a.label(f"{name}_end")
    a("s_endpgm")
    return a.text() + kd(name, 512, 256), 4 * 21504
```

```python
S, D, F = 2048, 640, 1728
NBLK = 148
WS_ACT = 0
ACT_BYTES = 64 * NBLK * 1024
WS_W2P = 0xA00000
NT = 74
W2P_BYTES = NT * 40 * 1024
WS_KV = 0xE00000
KV_STRIDE = 8192
KV_BYTES = 8 * KV_STRIDE
WS_STATS = 0xE20000
STATS_BYTES = 2048 * 8
WS_CSP = 0xE30000
CSP_BYTES = 3 * 5376 * 4
DBG_STATS = 0
DBG_CS = 16
DBG_KVZ = 32
DBG_KVD = 40
```

```python
import sys
import gen_a2, gen_b
NAME = "parallel_sum__linear_attn_block__glu_gated_glu__prompt"
def build_text(**kw):
    txa, ldsa = gen_a2.gen_front("front_kernel", mapv=kw.get("mapv", 0))
    txb, ldsb = gen_b.gen_final("final_kernel")
    hdr = f"""; {NAME}: LN -> [linear attention | GLU] -> out projection, two launches.
; @launch kernel=front_kernel grid=(256,1,1) block=(512,1,1) lds={ldsa}
; @launch kernel=final_kernel grid=(256,1,1) block=(256,1,1) lds={ldsb}
.amdgcn_target "amdgcn-amd-amdhsa--gfx950"
.text
"""
    return hdr + txa + txb
if __name__ == "__main__":
    out = sys.argv[1] if len(sys.argv) > 1 else f"cdna_kernels/{NAME}.s"
    open(out, "w").write(build_text())
    print("wrote", out)
```

```python
from asmlib import *
from layout import *
import struct

T0BUF, T1BUF, EBUF = 0, 16384, 32768
RING0 = 49152
ZL = 162816
RING_END = ZL
LDS_BYTES = 163840
RING_LIM = {("Q", 0): 98304, ("Q", 1): 98304, ("KV", 0): 98304, ("KV", 1): 81920}
FRA = EBUF
FRB = 131072
KVT_P = 155648
KVC = 147456
KVF = EBUF
PD, NB = 4, 5
OPT = dict(mapv=0)
SPIN_MAX = 20000
STORE_FLAGS = ""
def fbits(x): return "0x%08x" % struct.unpack("<I", struct.pack("<f", x))[0]
LOG2E = 1.4426950408889634

class Q:
    def __init__(self): self.n = 0
    def issue(self, k=1):
        self.n += k
        return self.n
    def left(self, seq): return self.n - seq

def passes_for(typ):
    if typ == "Q": return [("q", 3, True), ("G", 2, True), ("U", 2, True), ("G", 2, True), ("U", 2, True)]
    return [("k", 3, False), ("v", 2, False), ("G", 2, True), ("U", 2, True), ("H", 2, True)]

class Plan:
    def __init__(self, typ):
        self.typ = typ
        self.ps = passes_for(typ)
        st = []
        for X in range(5):
            for b in range(5): st.append(dict(X=X, t0=8 * b, nt=8, size=24576 if X == 0 else 16384))
        p = RING0
        for s in st:
            lim = RING0 + RING_LIM[(typ, min(s['X'], 1))]
            if p + s['size'] > lim: p = RING0
            s['pos'] = p; p += s['size']
        for i, s in enumerate(st):
            e = 0
            for i2 in range(i):
                s2 = st[i2]
                if s2['pos'] < s['pos'] + s['size'] and s['pos'] < s2['pos'] + s2['size']: e = max(e, i2 + 3)
            s['earliest'] = e
        self.st = st; self.ns = len(st)
        items = []
        for si, s in enumerate(st):
            X = s['X']; T = self.ps[X][1]
            order = (2, 0, 1) if (X == 0 and s['t0'] == 32) else range(T)
            for tau in order:
                for i in range(s['nt']): items.append((X, s['t0'] + i, tau, si))
        self.items = items
        self.bpos = {0: -1}
        for g in range(len(items) - PD):
            if items[g + PD][3] != items[g + PD - 1][3]: self.bpos[items[g + PD][3]] = g
        self.bpos[self.ns] = len(items)
        last = {}
        for f, (X, t, tau, si) in enumerate(items):
            if t == 39: last[(X, tau)] = f
        self.last = last
        endp = {X: max(last[(X, tau)] for tau in range(self.ps[X][1])) for X in range(5)}
        d = []
        for q in range(4): d.append((last[(0, 2)] + 3 + 3 * q, 0, 2, q))
        for X in range(4):
            e = endp[X]
            if typ == "KV" and X <= 1:
                for q in range(4): d.append((last[(X, 0)] + 3 + q, X, 0, q))
                for q in range(4): d.append((last[(X, 1)] + 3 + q, X, 1, q))
            elif X == 3:
                for q in range(4): d.append((e + 2 + 5 * q, X, 0, q))
                for q in range(4): d.append((e + 22 + 5 * q, X, 1, q))
            else:
                for q in range(4): d.append((e + 2 + 7 * q, X, 0, q))
                for q in range(4): d.append((e + 34 + 7 * q, X, 1, q))
        self.dumps = sorted(d)
        self.win = {}
        for key in sorted({(X, tau) for _, X, tau, _ in d}):
            fl = max(f for f, X, tau, q in d if (X, tau) == key)
            b = min(b for b, g in self.bpos.items() if g >= fl + PD + 2)
            nxt = [f for f, X, tau, q in d if tau == key[1] and X > key[0]]
            if nxt and key[1] < 2: hi = max(b for b, g in self.bpos.items() if g <= min(nxt))
            else: hi = 99 if key[1] < 2 else 12
            self.win[key] = (b + 1, hi)
        self.win[(4, 0)] = (self.ns + 1, 99); self.win[(4, 1)] = (self.ns + 1, 99)
        self.last_pos = (st[self.ns - 5]['pos'], st[self.ns - 4]['pos'])

VA = 0
SA, SB, EE = 160, 192, 224
V_AD0, V_AD1, V_TR20, V_DW = 244, 245, 246, 247
V_XR0, V_XR1, V_XD, V_TR3, V_LANE = 248, 249, 250, 251, 252
V_AAUG = 248
V_AUGL = 252

def acc_regs(X, tau):
    if X == 0: return [SA, SA + 16, EE][tau]
    return (SB if X % 2 == 1 else SA) + 16 * tau
def bbuf(X, i):
    if X == 0: return SB + 4 * i
    return EE + 4 * i

class Compute:
    def __init__(self, a, typ):
        self.a = a; self.typ = typ
        self.P = Plan(typ)
        self.lq = Q(); self.pend = {}
    def set_addr(self, si):
        a = self.a; s = self.P.st[si]; T = self.P.ps[s['X']][1]
        if T == 2:
            a(f"v_add_u32 v{V_AD0}, {s['pos']}, v{V_TR20}")
            a(f"v_xor_b32 v{V_AD1}, 64, v{V_AD0}")
        else:
            a(f"v_add_u32 v{V_AD0}, {s['pos']}, v{V_TR3}")
    def reads(self, f):
        a = self.a; X, t, tau, si = self.P.items[f]; T = self.P.ps[X][1]
        b = bbuf(X, f % NB)
        if t == 40:
            o = X * AUG_STRIDE + tau * 64
            a(f"ds_read_b64_tr_b16 {vr(b,2)}, v{V_AUGL} offset:{o}")
            a(f"ds_read_b64_tr_b16 {vr(b+2,2)}, v{V_AUGL} offset:{o}")
        else:
            tl = t - self.P.st[si]['t0']
            if T == 2: reg, o1, o2 = (V_AD0 if tau == 0 else V_AD1), tl * 2048, tl * 2048 + 512
            else: reg, o1, o2 = V_AD0, tl * 3072 + tau * 64, tl * 3072 + tau * 64 + 768
            a(f"ds_read_b64_tr_b16 {vr(b,2)}, v{reg} offset:{o1}")
            a(f"ds_read_b64_tr_b16 {vr(b+2,2)}, v{reg} offset:{o2}")
        self.pend[f] = self.lq.issue(2)
    def mfma(self, f):
        a = self.a; X, t, tau, si = self.P.items[f]; sw = self.P.ps[X][2]
        a(f"s_waitcnt lgkmcnt({min(self.lq.left(self.pend[f]), 15)})")
        acc = vr(acc_regs(X, tau), 16)
        c = "0" if t == 0 else acc
        w = vr(bbuf(X, f % NB), 4); x = vr(VA + 4 * t, 4) if t < 40 else vr(V_AAUG, 4)
        if sw: a(f"v_mfma_f32_32x32x16_bf16 {acc}, {w}, {x}, {c}")
        else: a(f"v_mfma_f32_32x32x16_bf16 {acc}, {x}, {w}, {c}")
    def dump(self, X, tau, q):
        base = [T0BUF, T1BUF, EBUF][tau]
        self.a(f"ds_write_b128 v{V_DW}, {vr(acc_regs(X, tau) + 4*q, 4)} offset:{base + q*1024}")
        self.lq.issue(1)

def a_load(a, t):
    if t % 4 == 0 and t > 0: a("s_add_u32 s72, s72, 4096")
    a(f"buffer_load_dwordx4 {vr(VA+4*t,4)}, v{V_XD}, s[28:31], s72 offen offset:{(t%4)*1024}")

def gen_compute(a, typ):
    C = Compute(a, typ); P = C.P
    bat = {g: b for b, g in P.bpos.items() if 1 <= b < P.ns}
    AL0 = OPT.get("al0", 12)
    issued = [AL0]
    a("s_barrier")
    C.set_addr(0)
    for i in range(PD): C.reads(i)
    dq = list(P.dumps)
    seen = set()
    for f, (X, t, tau, si) in enumerate(P.items):
        if f in bat:
            a("s_barrier"); C.set_addr(bat[f])
        if f + PD < len(P.items): C.reads(f + PD)
        if X == 0 and t not in seen:
            seen.add(t)
            a(f"s_waitcnt vmcnt({issued[0] - 1 - max(seen)})")
        C.mfma(f)
        if X == 0 and issued[0] < 40 and f % 2 == 1:
            a_load(a, issued[0]); issued[0] += 1
        while dq and dq[0][0] <= f:
            _, Xd, td, q = dq.pop(0)
            C.dump(Xd, td, q)
    assert not dq
    a(f"v_add_u32 v{V_AD0}, {P.last_pos[0]}, v{V_DW}")
    a(f"v_add_u32 v{V_AD1}, {P.last_pos[1]}, v{V_DW}")
    a("s_nop 7")
    for tau in range(2):
        for q in range(4):
            a(f"ds_write_b128 v{V_AD0 + tau}, {vr(acc_regs(4, tau) + 4*q, 4)} offset:{q*1024}")
    a("s_waitcnt lgkmcnt(0)")
    a("s_barrier")

def compute_setup(a):
    srd(a, 28, 22, 23, XNP_BYTES, WS_XNP)
    L = V_LANE
    a(f"v_and_b32 v{L}, 63, v0")
    a(f"v_lshlrev_b32 v{V_XD}, 4, v{L}")
    a("s_lshl_b32 s72, s25, 2")
    a("s_add_u32 s72, s72, s24")
    a("s_mul_i32 s72, s72, 40960")
    for t in range(OPT.get("al0", 12)): a_load(a, t)
    t0, t1, t2, t3, t4, t5, t6 = 232, 233, 234, 235, 236, 237, 238
    a(f"v_lshrrev_b32 v{t1}, 5, v{L}")
    a(f"v_bfe_u32 v{t2}, v{L}, 2, 2")
    a(f"v_lshlrev_b32 v{t3}, 3, v{t1}")
    a(f"v_add_u32 v{t3}, v{t3}, v{t2}")
    a(f"v_bfe_u32 v{t4}, v{L}, 4, 1")
    a(f"v_lshlrev_b32 v{t4}, 5, v{t4}")
    a(f"v_and_b32 v{t5}, 3, v{L}")
    a(f"v_lshlrev_b32 v{t5}, 3, v{t5}")
    a(f"v_add_u32 v{t4}, v{t4}, v{t5}")
    a(f"v_lshlrev_b32 v{t5}, 7, v{t3}")
    a(f"v_add_u32 v{t5}, v{t5}, v{t4}")
    a(f"v_lshrrev_b32 v{t6}, 1, v{t2}")
    a(f"v_lshlrev_b32 v{t6}, 6, v{t6}")
    a(f"v_add_u32 v{V_TR20}, v{t5}, v{t6}")
    a(f"v_mul_u32_u24 v{t5}, 192, v{t3}")
    a(f"v_add_u32 v{V_TR3}, v{t5}, v{t4}")
    a("s_lshl_b32 s73, s24, 12")
    a(f"v_add_u32 v{V_DW}, s73, v{V_XD}")

AV_P2G, AV_P2W, AV_P2H = 8, 9, 10
AV_P3 = 11
AV_L16, AV_LANE = 14, 15
AV_RSTD, AV_C1, AV_IRS, AV_C3 = 16, 17, 18, 19
AV_DR = 20
AV_HF, AV_L31 = 23, 24
AV_T = 25
ZACC = 29
AV_E = 30
SIG = 32
WD, WT = 64, 96
TD = [64, 80]
MT = 96
PQ = 128; PKF = 128; VF = 152
W2 = 176
RS = 176
OB = 176
SF = 208
CFB = 128

class Aux:
    def __init__(self, a, typ):
        self.a = a; self.typ = typ
        self.vq = Q()
        self.stage_seq = {}; self.dmaq = []
        self.passes = passes_for(typ)
        self.P = Plan(typ)
    def col_base(self, X, dst):
        a = self.a; name = self.passes[X][0]
        if name in ("G", "U"):
            src = 32 if name == "G" else 36
            if self.typ == "Q":
                a(f"s_lshl_b32 s{dst}, s26, 8")
                if X >= 3: a(f"s_add_u32 s{dst}, s{dst}, 128")
            else:
                a(f"s_lshl_b32 s{dst}, s26, 7"); a(f"s_add_u32 s{dst}, s{dst}, 2048")
            return src, 3456
        if name == "H":
            a(f"s_lshl_b32 s{dst}, s26, 6"); a(f"s_add_u32 s{dst}, s{dst}, 3072"); return 32, 3456
        off = {"q": 0, "k": 1280, "v": 2560}[name]
        a(f"s_mul_i32 s{dst}, s26, 160")
        if off: a(f"s_add_u32 s{dst}, s{dst}, {off}")
        return 28, 3840
    def queue_stage(self, si):
        a = self.a; st = self.P.st[si]; X = st['X']
        name, T, _ = self.passes[X]
        pitch = {"G": 3456, "U": 3456, "H": 3456}.get(name, 3840)
        rows = st['nt'] * 16; rows_w = rows // 4
        n = 4 if T == 2 else rows_w * 12 // 64
        def head():
            if st['t0'] == 0:
                src, _p = self.col_base(X, 68)
                for i in range(4): a(f"s_mov_b32 s{64+i}, s{src+i}")
            a(f"s_mul_i32 s71, s24, {rows_w*pitch}")
            a("s_add_u32 s71, s71, s68")
            a(f"s_mul_i32 s69, s24, {n*1024}")
            a(f"s_add_u32 s55, s69, {st['pos']}")
            a(f"s_add_u32 s68, s68, {rows*pitch}")
        def mk(i):
            def f():
                if i == 0: head()
                a("s_mov_b32 m0, s55")
                a("s_add_u32 s55, s55, 1024")
                if T == 2:
                    if name == "H":
                        a("s_mov_b64 exec, s[76:77]")
                        a(f"buffer_load_dwordx4 v{AV_P2H}, s[32:35], s71 offen lds")
                        a("s_mov_b64 exec, s[78:79]")
                        a(f"buffer_load_dwordx4 v{AV_P2H}, s[36:39], s71 offen lds")
                        a("s_mov_b64 exec, -1")
                        self.vq.issue(2)
                    else:
                        v = AV_P2W if name == "v" else AV_P2G
                        a(f"buffer_load_dwordx4 v{v}, s[64:67], s71 offen lds")
                        self.vq.issue(1)
                    if i < 3:
                        a(f"s_add_u32 s71, s71, {8*pitch}")
                else:
                    a(f"buffer_load_dwordx4 v{AV_P3 + i%3}, s[64:67], s71 offen lds")
                    self.vq.issue(1)
                    if i == 2 and n > 3: a(f"s_add_u32 s71, s71, {16*pitch}")
                if i == n - 1: self.stage_seq[si] = self.vq.n
            return f
        self.dmaq += [mk(i) for i in range(n)]
    def tick(self): pass
    def flush(self):
        while self.dmaq: self.dmaq.pop(0)()
    def issue_stage(self, si):
        self.queue_stage(si); self.flush()
    def wait_vm(self, seq):
        self.a(f"s_waitcnt vmcnt({min(63, self.vq.left(seq))})")

def lg0(A): A.a("s_waitcnt lgkmcnt(0)")

def aux_setup(a, typ):
    L = AV_LANE
    a(f"v_and_b32 v{L}, 63, v0")
    a(f"v_lshlrev_b32 v{AV_L16}, 4, v{L}")
    a(f"v_lshrrev_b32 v1, 3, v{L}")
    a(f"v_bfe_u32 v2, v{L}, 2, 1")
    a(f"v_bfe_u32 v3, v{L}, 4, 1")
    a(f"v_xor_b32 v2, v2, v3")
    a(f"v_and_b32 v3, 3, v{L}")
    a(f"v_lshlrev_b32 v3, 4, v3")
    a(f"v_lshlrev_b32 v4, 6, v2")
    a(f"v_add_u32 v4, v4, v3")
    a(f"v_mul_u32_u24 v5, 3456, v1")
    a(f"v_add_u32 v{AV_P2G}, v5, v4")
    a(f"v_add_u32 v{AV_P2H}, v5, v3")
    a(f"v_mul_u32_u24 v5, 3840, v1")
    a(f"v_add_u32 v{AV_P2W}, v5, v4")
    a(f"v_cmp_eq_u32 s[76:77], 0, v2")
    a(f"v_cmp_eq_u32 s[78:79], 1, v2")
    for i in range(3):
        a(f"v_add_u32 v1, {64*i}, v{L}")
        a(f"v_mul_u32_u24 v2, 171, v1")
        a(f"v_lshrrev_b32 v2, 11, v2")
        a(f"v_mul_u32_u24 v3, 12, v2")
        a(f"v_sub_u32 v3, v1, v3")
        a(f"v_lshlrev_b32 v4, 4, v3")
        if typ == "KV":
            a(f"v_add_u32 v5, 1248, v4")
            a(f"v_cmp_le_u32 vcc, 10, v3")
            a("s_nop 1")
            a(f"v_cndmask_b32 v4, v4, v5, vcc")
        a(f"v_mul_u32_u24 v5, 3840, v2")
        a(f"v_add_u32 v{AV_P3+i}, v5, v4")
    a(f"v_lshrrev_b32 v{AV_HF}, 5, v{L}")
    a(f"v_and_b32 v{AV_L31}, 31, v{L}")
    a("s_lshl_b32 s69, s24, 12")
    a(f"v_add_u32 v{AV_DR}, s69, v{AV_L16}")

def get_epoch(A):
    a = A.a
    lab = a.newlabel("Lep")
    a("s_cmp_lg_u32 s2, 0"); a(f"s_cbranch_scc1 {lab}")
    a("s_cmp_lg_u32 s24, 0"); a(f"s_cbranch_scc1 {lab}")
    a("s_memrealtime s[80:81]")
    a("s_waitcnt lgkmcnt(0)")
    a("s_or_b32 s80, s80, 1")
    a(f"v_mov_b32 v{AV_T+1}, s80"); a(f"v_mov_b32 v{AV_T+2}, s81"); a(f"v_mov_b32 v{AV_T}, 0")
    a("s_mov_b64 exec, 1")
    a(f"buffer_store_dwordx2 {vr(AV_T+1,2)}, v{AV_T}, s[52:55], 0 offen sc1")
    a("s_mov_b64 exec, -1")
    a.label(lab)
def epoch_issue(A):
    a = A.a
    a(f"v_mov_b32 v{AV_T}, 0")
    a(f"buffer_load_dwordx2 {vr(AV_E,2)}, v{AV_T}, s[52:55], 0 offen sc1")
    A.ep_seq = A.vq.issue(1)
def epoch_check(A):
    a = A.a
    A.wait_vm(A.ep_seq)
    l1 = a.newlabel("Lwe"); l2 = a.newlabel("Lec")
    a(f"v_readfirstlane_b32 s81, v{AV_E}")
    a("s_cmp_lg_u32 s81, 0")
    a(f"s_cbranch_scc1 {l2}")
    a(f"v_mov_b32 v{AV_T}, 0")
    a(f"s_mov_b32 s70, {SPIN_MAX}")
    a.label(l1)
    a(f"buffer_load_dwordx2 {vr(AV_E,2)}, v{AV_T}, s[52:55], 0 offen sc1")
    a("s_waitcnt vmcnt(0)")
    a(f"v_readfirstlane_b32 s81, v{AV_E}")
    a("s_cmp_lg_u32 s81, 0")
    a(f"s_cbranch_scc1 {l2}")
    a("s_sleep 1")
    a("s_sub_u32 s70, s70, 1")
    a("s_cmp_lg_u32 s70, 0")
    a(f"s_cbranch_scc1 {l1}")
    a.label(l2)
def _tagcmp(a, tag_regs):
    a("s_mov_b64 s[82:83], exec")
    for lo in tag_regs:
        a(f"v_cmp_eq_u32 vcc, v{lo}, v{AV_E}")
        a("s_and_b64 s[82:83], s[82:83], vcc")
        a(f"v_cmp_eq_u32 vcc, v{lo+1}, v{AV_E+1}")
        a("s_and_b64 s[82:83], s[82:83], vcc")
    a("s_cmp_eq_u64 s[82:83], exec")
def tag_check(A, seq, emit_loads, tag_regs):
    a = A.a
    A.wait_vm(seq)
    done = a.newlabel("Ltc"); l1 = a.newlabel("Ltr")
    _tagcmp(a, tag_regs)
    a(f"s_cbranch_scc1 {done}")
    a(f"s_mov_b32 s70, {SPIN_MAX}")
    a.label(l1)
    a("s_sleep 1")
    emit_loads()
    a("s_waitcnt vmcnt(0)")
    _tagcmp(a, tag_regs)
    a(f"s_cbranch_scc1 {done}")
    a("s_sub_u32 s70, s70, 1")
    a("s_cmp_lg_u32 s70, 0")
    a(f"s_cbranch_scc1 {l1}")
    a.label(done)
def flg_srd(A): srd(A.a, 92, 22, 23, FLG_BYTES, WS_FLG)
def store_flag(A):
    a = A.a
    a(f"v_mov_b32 v{AV_T}, s80")
    a(f"v_mov_b32 v{AV_T+1}, 1")
    a("s_mov_b64 exec, 1")
    a(f"buffer_store_dword v{AV_T+1}, v{AV_T}, s[92:95], 0 offen sc1")
    a("s_mov_b64 exec, -1")

def task_stats_load(A):
    a = A.a
    a("s_lshl_b32 s80, s25, 7")
    a("s_lshl_b32 s81, s19, 3")
    a("s_add_u32 s80, s80, s81")
    a("s_lshl_b32 s81, s24, 1")
    a("s_add_u32 s80, s80, s81")
    a(f"v_add_u32 v{W2}, s80, v{AV_HF}")
    a(f"v_mul_u32_u24 v{W2+1}, 1280, v{W2}")
    a(f"v_lshlrev_b32 v{W2+2}, 4, v{AV_L31}")
    a(f"v_add_u32 v{W2+1}, v{W2+1}, v{W2+2}")
    a(f"v_cmp_gt_u32 vcc, 16, v{AV_L31}")
    a(f"v_mov_b32 v{W2+3}, 0x7f000000")
    a(f"v_lshlrev_b32 v{W2}, 4, v{W2}")
    a(f"v_cndmask_b32 v{W2+2}, v{W2+3}, v{W2+1}, vcc")
    a(f"buffer_load_dwordx4 {vr(W2+4,4)}, v{W2+1}, s[72:75], 0 offen")
    a(f"buffer_load_dwordx4 {vr(W2+8,4)}, v{W2+1}, s[72:75], 0 offen offset:512")
    a(f"buffer_load_dwordx4 {vr(W2+12,4)}, v{W2+2}, s[72:75], 0 offen offset:1024")
    A.st_seq = A.vq.issue(3)
def red32(a, v, t):
    for m in ("quad_perm:[1,0,3,2]", "quad_perm:[2,3,0,1]", "row_half_mirror", "row_mirror"):
        a("s_nop 1")
        a(f"v_add_f32_dpp v{v}, v{v}, v{v} {m} row_mask:0xf bank_mask:0xf")
    a(f"v_mov_b32 v{t}, v{v}")
    a("s_nop 1")
    a(f"v_permlane16_swap_b32 v{v}, v{t}")
    a("s_nop 1")
    a(f"v_add_f32 v{v}, v{v}, v{t}")
def task_stats_compute(A):
    a = A.a
    A.wait_vm(A.st_seq)
    X = W2 + 16
    for i in range(12):
        a(f"v_lshlrev_b32 v{X+2*i}, 16, v{W2+4+i}")
        a(f"v_and_b32 v{X+2*i+1}, 0xffff0000, v{W2+4+i}")
    s0, s1 = W2 + 40, W2 + 41
    a(f"v_add_f32 v{s0}, v{X}, v{X+1}")
    a(f"v_add_f32 v{s1}, v{X+2}, v{X+3}")
    for i in range(4, 24, 2):
        a(f"v_add_f32 v{s0}, v{s0}, v{X+i}")
        a(f"v_add_f32 v{s1}, v{s1}, v{X+i+1}")
    a(f"v_add_f32 v{s0}, v{s0}, v{s1}")
    A.tick()
    red32(a, s0, s1)
    a(f"v_mul_f32 v{s0}, {fbits(1/640)}, v{s0}")
    for i in range(24): a(f"v_sub_f32 v{X+i}, v{X+i}, v{s0}")
    a(f"v_cmp_gt_u32 vcc, 16, v{AV_L31}")
    q0, q1 = W2 + 42, W2 + 43
    a(f"v_mul_f32 v{q0}, v{X}, v{X}")
    a(f"v_mul_f32 v{q1}, v{X+1}, v{X+1}")
    for i in range(16, 24): a(f"v_cndmask_b32 v{X+i}, 0, v{X+i}, vcc")
    for i in range(2, 24, 2):
        a(f"v_fmac_f32 v{q0}, v{X+i}, v{X+i}")
        a(f"v_fmac_f32 v{q1}, v{X+i+1}, v{X+i+1}")
    a(f"v_add_f32 v{q0}, v{q0}, v{q1}")
    A.tick()
    red32(a, q0, q1)
    a(f"v_mul_f32 v{q0}, {fbits(1/640)}, v{q0}")
    a(f"v_add_f32 v{q0}, {fbits(1e-5)}, v{q0}")
    a(f"v_rsq_f32 v{q0}, v{q0}")
    a(f"v_mov_b32 v{q1}, v{s0}")
    a(f"v_mov_b32 v{q0+2}, v{AV_E}")
    a(f"v_mov_b32 v{q0+3}, v{AV_E+1}")
    a(f"v_cmp_eq_u32 vcc, 0, v{AV_L31}")
    a("s_nop 1")
    a("s_and_saveexec_b64 s[82:83], vcc")
    a(f"buffer_store_dwordx4 {vr(q0,4)}, v{W2}, s[84:87], 0 offen sc1")
    a("s_mov_b64 exec, s[82:83]")
    A.vq.issue(1)

def task_cs_load(A):
    a = A.a
    a("s_mul_i32 s80, s2, 0x5556")
    a("s_lshr_b32 s80, s80, 16")
    a("s_mul_i32 s81, s80, 3")
    a("s_sub_u32 s81, s2, s81")
    a("s_mov_b32 s92, s28"); a("s_mov_b32 s93, s29"); a("s_mov_b32 s94, s30"); a("s_mov_b32 s95, 0x00020000")
    a("s_mov_b32 s82, 3840")
    a("s_lshl_b32 s83, s80, 7")
    l1 = a.newlabel("Lcs")
    a("s_cmp_lt_u32 s80, 30")
    a(f"s_cbranch_scc1 {l1}")
    a("s_mov_b32 s92, s32"); a("s_mov_b32 s93, s33"); a("s_mov_b32 s94, s34")
    a("s_mov_b32 s82, 3456")
    a(f"s_sub_u32 s83, s83, {30*128}")
    a("s_cmp_lt_u32 s80, 57")
    a(f"s_cbranch_scc1 {l1}")
    a("s_mov_b32 s92, s36"); a("s_mov_b32 s93, s37"); a("s_mov_b32 s94, s38")
    a(f"s_sub_u32 s83, s83, {27*128}")
    a.label(l1)
    a("s_lshl_b32 s69, s81, 8")
    a("s_lshl_b32 s70, s24, 6")
    a("s_add_u32 s69, s69, s70")
    a(f"v_lshrrev_b32 v{W2+48}, 3, v{AV_LANE}")
    a(f"v_add_u32 v{W2+48}, s69, v{W2+48}")
    a(f"v_mul_lo_u32 v{W2+48}, v{W2+48}, s82")
    a(f"v_and_b32 v{W2+49}, 7, v{AV_LANE}")
    a(f"v_lshlrev_b32 v{W2+49}, 4, v{W2+49}")
    a(f"v_add_u32 v{W2+48}, v{W2+48}, v{W2+49}")
    a("s_lshl_b32 s70, s82, 3")
    a("s_cmp_ge_u32 s2, 252")
    a("s_cselect_b32 s83, 0x7f000000, s83")
    a("s_mul_i32 s96, s81, 5376")
    a("s_lshl_b32 s97, s80, 6")
    a("s_add_u32 s96, s96, s97")
    a("s_lshl_b32 s96, s96, 4")
    a("s_cmp_ge_u32 s2, 252")
    a("s_cselect_b32 s96, 0x7f000000, s96")
    for i in range(8):
        a(f"buffer_load_dwordx4 {vr(PQ+4*i,4)}, v{W2+48}, s[92:95], s83 offen")
        if i < 7: a("s_add_u32 s83, s83, s70")
    A.cs_seq = A.vq.issue(8)
def task_cs_compute(A):
    a = A.a
    A.wait_vm(A.cs_seq)
    acc = WD
    for i in range(8):
        for r in range(4):
            src = PQ + 4 * i + r
            d = acc if i == 0 else WT
            a(f"v_lshlrev_b32 v{d+2*r}, 16, v{src}")
            a(f"v_and_b32 v{d+2*r+1}, 0xffff0000, v{src}")
        if i:
            for e in range(8): a(f"v_add_f32 v{acc+e}, v{acc+e}, v{WT+e}")
        if i % 2: A.tick()
    a("s_nop 1")
    for e in range(8): a(f"v_add_f32_dpp v{acc+e}, v{acc+e}, v{acc+e} row_ror:8 row_mask:0xf bank_mask:0xf")
    for sw in ("v_permlane16_swap_b32", "v_permlane32_swap_b32"):
        for e in range(8): a(f"v_mov_b32 v{WT+e}, v{acc+e}")
        a("s_nop 1")
        for e in range(8): a(f"{sw} v{acc+e}, v{WT+e}")
        a("s_nop 1")
        for e in range(8): a(f"v_add_f32 v{acc+e}, v{acc+e}, v{WT+e}")
    a("s_lshl_b32 s80, s24, 8")
    a(f"v_lshlrev_b32 v{WT}, 5, v{AV_LANE}")
    a(f"v_add_u32 v{WT}, s80, v{WT}")
    a(f"v_add_u32 v{WT}, {ZL}, v{WT}")
    a("s_mov_b64 exec, 0xff")
    a(f"ds_write_b128 v{WT}, {vr(acc,4)}")
    a(f"ds_write_b128 v{WT}, {vr(acc+4,4)} offset:16")
    a("s_mov_b64 exec, -1")
    lg0(A)
def task_cs_store(A):
    a = A.a
    lab = a.newlabel("Lcss")
    a("s_cmp_lg_u32 s24, 0")
    a(f"s_cbranch_scc1 {lab}")
    a(f"v_lshlrev_b32 v{WT}, 2, v{AV_LANE}")
    a(f"v_add_u32 v{WT+1}, {ZL}, v{WT}")
    for w in range(4): a(f"ds_read_b32 v{WD+4+w}, v{WT+1} offset:{w*256}")
    lg0(A)
    a(f"v_add_f32 v{WD}, v{WD+4}, v{WD+5}")
    a(f"v_add_f32 v{WD+1}, v{WD+6}, v{WD+7}")
    a(f"v_add_f32 v{WD}, v{WD}, v{WD+1}")
    a(f"v_mov_b32 v{WD+2}, v{AV_E}")
    a(f"v_mov_b32 v{WD+3}, v{AV_E+1}")
    a(f"buffer_store_dwordx4 {vr(WD,4)}, v{AV_L16}, s[88:91], s96 offen sc1")
    a.label(lab)

def task_stats_fetch1(A):
    a = A.a
    a("s_lshl_b32 s80, s25, 7")
    a("s_lshl_b32 s81, s24, 5")
    a("s_add_u32 s80, s80, s81")
    a(f"v_add_u32 v{SF}, s80, v{AV_L31}")
    a(f"v_lshlrev_b32 v{SF}, 4, v{SF}")
    a(f"buffer_load_dwordx4 {vr(SF+4,4)}, v{SF}, s[84:87], 0 offen sc1")
    A.sf_seq = A.vq.issue(1)
def task_stats_fetch2(A):
    a = A.a; typ = A.typ
    tag_check(A, A.sf_seq, lambda: a(f"buffer_load_dwordx4 {vr(SF+4,4)}, v{SF}, s[84:87], 0 offen sc1"), [SF + 6])
    R_, M_ = SF + 4, SF + 5
    a(f"v_mov_b32 v{AV_RSTD}, v{R_}")
    a(f"v_mul_f32 v{AV_C1}, {fbits(-LOG2E)}, v{R_}")
    a(f"v_mul_f32 v{AV_C3}, {fbits(LOG2E)}, v{R_}")
    a(f"v_rcp_f32 v{AV_IRS}, v{R_}")
    t = SF + 8
    a(f"v_sub_f32 v{t}, 0, v{M_}")
    a(f"v_cvt_pk_bf16_f32 v{t+1}, v{t}, v{t}")
    a(f"v_and_b32 v{t+2}, 0xffff0000, v{t+1}")
    a(f"v_sub_f32 v{t+2}, v{t}, v{t+2}")
    a(f"v_cvt_pk_bf16_f32 v{t+2}, v{t+2}, v{t+2}")
    a(f"v_cmp_eq_u32 vcc, 0, v{AV_HF}")
    a(f"v_mov_b32 v{t+6}, 0"); a(f"v_mov_b32 v{t+7}, 0")
    a(f"v_cndmask_b32 v{t+4}, 0, v{t+1}, vcc")
    a(f"v_cndmask_b32 v{t+5}, 0, v{t+2}, vcc")
    a("s_lshl_b32 s81, s24, 10")
    a(f"s_add_u32 s81, s81, {AUGB[typ] + 4096}")
    a(f"v_add_u32 v{t}, s81, v{AV_L16}")
    a(f"ds_write_b128 v{t}, {vr(t+4,4)}")
    a("s_lshl_b32 s81, s24, 7")
    a(f"v_lshlrev_b32 v{SF}, 2, v{AV_L31}")
    a(f"v_add_u32 v{SF}, s81, v{SF}")
    a(f"v_add_u32 v{SF}, {ST_RSTD}, v{SF}")
    a(f"ds_write_b32 v{SF}, v{AV_RSTD}")
    lg0(A)
def cs_params(A, X):
    a = A.a; name = A.passes[X][0]
    j80 = lambda dst, add: (a(f"s_mul_i32 s{dst}, s26, 80"), a(f"s_add_u32 s{dst}, s{dst}, {add}"))
    if name == "q": j80(80, 0); split = 96; a("s_mov_b32 s81, s80")
    elif name == "k": j80(80, 640); split = 80; j80(81, 1280 + 64 - 80)
    elif name == "v": j80(80, 1280); split = 96; a("s_mov_b32 s81, s80")
    elif name in ("G", "U"):
        b = 1920 if name == "G" else 3648
        if A.typ == "Q":
            a("s_lshl_b32 s80, s26, 7"); a(f"s_add_u32 s80, s80, {b + (64 if X >= 3 else 0)}")
        else:
            a("s_lshl_b32 s80, s26, 6"); a(f"s_add_u32 s80, s80, {b + 1024}")
        split = 96; a("s_mov_b32 s81, s80")
    else:
        a("s_lshl_b32 s80, s26, 5"); a(f"s_add_u32 s81, s80, {3648 + 1536 - 32}"); a(f"s_add_u32 s80, s80, {1920 + 1536}")
        split = 32
    return split
def cs_addr(A, X, rnd, dst):
    a = A.a
    split = cs_params(A, X)
    c = MT
    a(f"v_add_u32 v{c}, {64*rnd}, v{AV_LANE}")
    a(f"v_mov_b32 v{c+1}, s80")
    a(f"v_mov_b32 v{c+2}, s81")
    a(f"v_cmp_gt_u32 vcc, {split}, v{c}")
    a("s_nop 1")
    a(f"v_cndmask_b32 v{c+1}, v{c+2}, v{c+1}, vcc")
    a(f"v_add_u32 v{c+1}, v{c+1}, v{c}")
    a(f"v_cmp_gt_u32 vcc, 5376, v{c+1}")
    a("s_nop 1")
    a(f"v_cndmask_b32 v{c+1}, 0, v{c+1}, vcc")
    a(f"v_lshlrev_b32 v{dst}, 4, v{c+1}")
def cs_loads(A):
    a = A.a
    for r in range(3):
        for th in range(3):
            a(f"s_mov_b32 s69, {th*5376*16}")
            a(f"buffer_load_dwordx4 {vr(CFB+12*r+4*th,4)}, v{164+r}, s[88:91], s69 offen sc1")
def task_cs_fetch1(A):
    a = A.a
    end = a.newlabel("Lcfe")
    for w in range(4):
        lab = a.newlabel("Lcf")
        if w < 3:
            a(f"s_cmp_lg_u32 s24, {w}")
            a(f"s_cbranch_scc1 {lab}")
        cs_addr(A, w, 0, 164); cs_addr(A, w, 1, 165)
        if w < 3:
            a(f"s_branch {end}")
            a.label(lab)
    a.label(end)
    cs_addr(A, 4, 0, 166)
    cs_loads(A)
    A.cf_seq = A.vq.issue(9)
def task_cs_fetch2(A):
    a = A.a; typ = A.typ
    tag_check(A, A.cf_seq, lambda: cs_loads(A), [CFB + 12 * r + 4 * th + 2 for r in range(3) for th in range(3)])
    a(f"s_mul_i32 s80, s24, {AUG_STRIDE}")
    a(f"v_lshlrev_b32 v{MT}, 1, v{AV_LANE}")
    a(f"v_add_u32 v{MT+1}, s80, v{MT}")
    a(f"v_add_u32 v{MT+1}, {AUGB[typ]}, v{MT+1}")
    a(f"v_add_u32 v{MT+2}, {AUGB[typ] + 4*AUG_STRIDE}, v{MT}")
    for r in range(3):
        b = CFB + 12 * r
        a(f"v_add_f32 v{b}, v{b}, v{b+4}")
        a(f"v_add_f32 v{b}, v{b}, v{b+8}")
        a(f"v_cvt_pk_bf16_f32 v{b+1}, v{b}, v{b}")
        a(f"v_and_b32 v{b+2}, 0xffff0000, v{b+1}")
        a(f"v_sub_f32 v{b+2}, v{b}, v{b+2}")
        a(f"v_cvt_pk_bf16_f32 v{b+2}, v{b+2}, v{b+2}")
        ad = MT + 2 if r == 2 else MT + 1
        off = 128 if r == 1 else 0
        if r == 1: a("s_mov_b64 exec, 0xffffffff")
        a(f"ds_write_b16 v{ad}, v{b+1} offset:{off}")
        a(f"ds_write_b16 v{ad}, v{b+2} offset:{off+192}")
        a(f"ds_write_b16 v{ad}, v{b+1} offset:{off+384}")
        a(f"ds_write_b16 v{ad}, v{b+2} offset:{off+576}")
        if r == 1: a("s_mov_b64 exec, -1")
    lg0(A)

def task_zero(A):
    a = A.a
    lab = a.newlabel("Lz")
    a("s_cmp_lg_u32 s25, 0")
    a(f"s_cbranch_scc1 {lab}")
    for i in range(4): a(f"v_mov_b32 v{WT+i}, 0")
    a("s_lshl_b32 s80, s24, 11")
    a(f"buffer_store_dwordx4 {vr(WT,4)}, v{AV_L16}, s[48:51], s80 offen sc1")
    a(f"buffer_store_dwordx4 {vr(WT,4)}, v{AV_L16}, s[48:51], s80 offen offset:1024 sc1")
    a("s_waitcnt vmcnt(0)")
    a("s_lshl_b32 s80, s26, 7")
    a("s_lshl_b32 s81, s24, 4")
    a("s_add_u32 s80, s80, s81")
    a("s_add_u32 s80, s80, 8192")
    store_flag(A)
    a.label(lab)

def task_w2_load(A):
    a = A.a
    a("s_lshl_b32 s80, s24, 8")
    a("s_add_u32 s80, s80, s2")
    a("s_mul_i32 s81, s80, 0x199a")
    a("s_lshr_b32 s81, s81, 16")
    a("s_mul_i32 s82, s81, 10")
    a("s_sub_u32 s82, s80, s82")
    a("s_mul_i32 s97, s81, 40")
    a("s_lshl_b32 s83, s82, 2")
    a("s_add_u32 s97, s97, s83")
    a("s_lshl_b32 s97, s97, 10")
    a("s_cmp_ge_u32 s80, 740")
    a("s_cselect_b32 s97, 0x7f000000, s97")
    a("s_mov_b32 s92, s56"); a("s_mov_b32 s93, s57"); a("s_mov_b32 s94, s58"); a("s_mov_b32 s95, 0x00020000")
    a("s_lshl_b32 s83, s81, 5")
    lab = a.newlabel("Lw2")
    a("s_cmp_lt_u32 s81, 20")
    a(f"s_cbranch_scc1 {lab}")
    a("s_mov_b32 s92, s60"); a("s_mov_b32 s93, s61"); a("s_mov_b32 s94, s62")
    a("s_sub_u32 s83, s83, 640")
    a.label(lab)
    a("s_mul_i32 s83, s83, 1280")
    a("s_lshl_b32 s82, s82, 7")
    a("s_add_u32 s83, s83, s82")
    a("s_cmp_ge_u32 s80, 740")
    a("s_cselect_b32 s83, 0x7f000000, s83")
    a(f"v_lshrrev_b32 v{WT}, 3, v{AV_LANE}")
    a(f"v_mul_u32_u24 v{WT}, 1280, v{WT}")
    a(f"v_and_b32 v{WT+1}, 7, v{AV_LANE}")
    a(f"v_lshlrev_b32 v{WT+1}, 4, v{WT+1}")
    a(f"v_add_u32 v{WT}, v{WT}, v{WT+1}")
    a("s_lshl_b32 s69, s24, 12")
    a(f"s_add_u32 m0, s69, {W2S}")
    for i in range(4):
        a(f"buffer_load_dwordx4 v{WT}, s[92:95], s83 offen lds")
        if i < 3:
            a("s_add_u32 m0, m0, 1024")
            a(f"s_add_u32 s83, s83, {8*1280}")
    A.w2_seq = A.vq.issue(4)
def task_w2_store(A):
    a = A.a
    A.wait_vm(A.w2_seq)
    a(f"v_lshrrev_b32 v{WT}, 5, v{AV_LANE}")
    a(f"v_lshlrev_b32 v{WT}, 4, v{WT}")
    a(f"v_bfe_u32 v{WT+1}, v{AV_LANE}, 4, 1")
    a(f"v_lshlrev_b32 v{WT+1}, 2, v{WT+1}")
    a(f"v_add_u32 v{WT}, v{WT}, v{WT+1}")
    a(f"v_bfe_u32 v{WT+1}, v{AV_LANE}, 2, 2")
    a(f"v_add_u32 v{WT}, v{WT}, v{WT+1}")
    a(f"v_lshlrev_b32 v{WT}, 7, v{WT}")
    a(f"v_and_b32 v{WT+1}, 3, v{AV_LANE}")
    a(f"v_lshlrev_b32 v{WT+1}, 3, v{WT+1}")
    a(f"v_add_u32 v{WT}, v{WT}, v{WT+1}")
    a("s_lshl_b32 s69, s24, 12")
    a(f"s_add_u32 s69, s69, {W2S}")
    a(f"v_add_u32 v{WT}, s69, v{WT}")
    for nt in range(4):
        a(f"ds_read_b64_tr_b16 {vr(WD+4*nt,2)}, v{WT} offset:{nt*32}")
        a(f"ds_read_b64_tr_b16 {vr(WD+4*nt+2,2)}, v{WT} offset:{nt*32+1024}")
    lg0(A)
    for nt in range(4):
        a(f"buffer_store_dwordx4 {vr(WD+4*nt,4)}, v{AV_L16}, s[44:47], s97 offen offset:{nt*1024}")
    A.vq.issue(4)

def act_base(A, blk_expr_code):
    a = A.a
    def f():
        blk_expr_code()
        a("s_lshl_b32 s81, s25, 2")
        a("s_add_u32 s81, s81, s24")
        a(f"s_mul_i32 s81, s81, {NBLK}")
        a("s_add_u32 s81, s81, s82")
        a("s_lshl_b32 s81, s81, 10")
    return f
TDB = 64
WR = 112
def call(a, sub, idx):
    a(f"s_mov_b32 s70, {idx}")
    a(f"s_swappc_b64 s[62:63], s[{sub}:{sub+1}]")
SUB_SIG, SUB_H, SUB_PHI = 56, 58, 60
def gen_subs(a, name):
    a.label(f"{name}_sub_sig")
    a("s_set_gpr_idx_on s70, gpr_idx(SRC0,SRC1,DST)")
    for i in range(8): a(f"v_mul_f32 v{SIG+i}, s97, v{TDB+i}")
    for i in range(8): a(f"v_exp_f32 v{SIG+i}, v{SIG+i}")
    for i in range(8): a(f"v_add_f32 v{SIG+i}, 1.0, v{SIG+i}")
    for i in range(8): a(f"v_rcp_f32 v{SIG+i}, v{SIG+i}")
    a("s_set_gpr_idx_off")
    a("s_setpc_b64 s[62:63]")
    a.label(f"{name}_sub_h")
    a("s_set_gpr_idx_on s70, gpr_idx(SRC0,SRC1,DST)")
    for i in range(8): a(f"v_mul_f32 v{TDB+i}, v{TDB+i}, v{SIG+i}")
    a("s_set_gpr_idx_mode gpr_idx(SRC0,SRC1)")
    for i in range(4): a(f"v_cvt_pk_bf16_f32 v{MT+i}, v{TDB+2*i}, v{TDB+2*i+1}")
    a("s_set_gpr_idx_off")
    a(f"buffer_store_dwordx4 {vr(MT,4)}, v{AV_L16}, s[40:43], s81 offen {STORE_FLAGS}")
    a("s_setpc_b64 s[62:63]")
    a.label(f"{name}_sub_phi")
    a("s_set_gpr_idx_on s70, gpr_idx(SRC1)")
    for i in range(8): a(f"v_mul_f32 v{MT+i}, s98, v{TDB+i}")
    a("s_set_gpr_idx_off")
    for i in range(8): a(f"v_exp_f32_e64 v{MT+i}, v{MT+i} clamp")
    for i in range(8): a(f"v_add_f32 v{MT+i}, s99, v{MT+i}")
    a("s_set_gpr_idx_on s70, gpr_idx(SRC1)")
    for i in range(8): a(f"v_add_f32 v{WR+i}, v{MT+i}, v{TDB+i}")
    a("s_set_gpr_idx_off")
    for i in range(8): a(f"v_max_f32 v{WR+i}, v{WR+i}, v{MT+i}")
    a("s_setpc_b64 s[62:63]")
def subs_addr(a, name):
    a("s_getpc_b64 s[62:63]")
    lab = a.newlabel("Lpc"); a.label(lab)
    for sub, nm in ((SUB_SIG, "sig"), (SUB_H, "h"), (SUB_PHI, "phi")):
        a(f"s_add_u32 s{sub}, s62, {name}_sub_{nm}-{lab}")
        a(f"s_addc_u32 s{sub+1}, s63, 0")

def mo_read(A, buf, tau, nq=4):
    a = A.a; d = TDB + 16 * tau
    if buf < 60000:
        for q in range(nq): a(f"ds_read_b128 {vr(d+4*q,4)}, v{AV_DR} offset:{buf+q*1024}")
    else:
        a(f"v_add_u32 v{AV_T}, {buf}, v{AV_DR}")
        for q in range(nq): a(f"ds_read_b128 {vr(d+4*q,4)}, v{AV_T} offset:{q*1024}")
def mo_sig(A, hh):
    lg0(A); call(A.a, SUB_SIG, 8 * hh)
def mo_h(A, hh, sigidx_same, blk_code, blk):
    a = A.a; lg0(A)
    blk_code()
    if blk * 1024: a(f"s_add_u32 s81, s81, {blk*1024}")
    call(a, SUB_H, 8 * hh)
    A.vq.issue(1)
def mo_phi(A, hh, dst):
    a = A.a; lg0(A)
    call(a, SUB_PHI, 8 * hh)
    for i in range(4): a(f"v_cvt_pk_bf16_f32 v{dst+i}, v{WR+2*i}, v{WR+2*i+1}")
def mo_kv(A, hh, h, kind, dstf, tau):
    a = A.a; lg0(A)
    b = TDB + 8 * hh
    if kind == "v":
        for i in range(4): a(f"v_cvt_pk_bf16_f32 v{dstf+4*h+i}, v{b+2*i}, v{b+2*i+1}")
        return
    call(a, SUB_PHI, 8 * hh)
    if kind == "kv":
        a(f"v_cmp_gt_u32 vcc, 16, v{AV_L31}")
        a("s_nop 1")
        for k in range(8): a(f"v_cndmask_b32 v{WR+k}, v{b+k}, v{WR+k}, vcc")
    for i in range(4): a(f"v_cvt_pk_bf16_f32 v{dstf+4*h+i}, v{WR+2*i}, v{WR+2*i+1}")
    w = WR
    a(f"v_add_f32 v{MT}, v{w}, v{w+1}"); a(f"v_add_f32 v{MT+1}, v{w+2}, v{w+3}")
    a(f"v_add_f32 v{MT+2}, v{w+4}, v{w+5}"); a(f"v_add_f32 v{MT+3}, v{w+6}, v{w+7}")
    a(f"v_add_f32 v{MT}, v{MT}, v{MT+1}"); a(f"v_add_f32 v{MT+2}, v{MT+2}, v{MT+3}")
    if h == 0: a(f"v_add_f32 v{ZACC}, v{MT}, v{MT+2}")
    else:
        a(f"v_add_f32 v{MT}, v{MT}, v{MT+2}")
        a(f"v_add_f32 v{MT}, v{MT}, v{ZACC}")
        a(f"v_mov_b32 v{MT+1}, v{MT}")
        a("s_nop 1")
        a(f"v_permlane32_swap_b32 v{MT}, v{MT+1}")
        a(f"s_lshl_b32 s80, s24, {8 if tau < 2 else 6}")
        a(f"v_lshlrev_b32 v{AV_T}, 2, v{AV_L31}")
        a(f"v_add_f32 v{MT}, v{MT}, v{MT+1}")
        a(f"v_add_u32 v{AV_T}, s80, v{AV_T}")
        a(f"v_add_u32 v{AV_T}, {ZL + 128*tau if tau < 2 else KVT_P + 6720}, v{AV_T}")
        if tau == 2: a("s_mov_b64 exec, 0xffff")
        a(f"ds_write_b32 v{AV_T}, v{MT}")
        if tau == 2: a("s_mov_b64 exec, -1")

def kv_zflag1(A):
    a = A.a
    a("s_lshl_b32 s80, s26, 7"); a("s_add_u32 s80, s80, 8192")
    a(f"v_add_u32 v6, s80, v{AV_L16}")
    a("s_mov_b64 exec, 15")
    a(f"buffer_load_dwordx2 v[4:5], v6, s[92:95], 0 offen sc1")
    a("s_mov_b64 exec, -1")
    A.zf_seq = A.vq.issue(1)
def kv_write_frags(A):
    a = A.a
    a("s_lshl_b32 s80, s24, 10")
    a(f"v_add_u32 v{AV_T}, s80, v{AV_L16}")
    a(f"v_add_u32 v{AV_T+1}, {FRB}, v{AV_T}")
    for tile in range(5):
        for blk in range(2):
            src = (PKF + 8 * tile if tile < 3 else VF + 8 * (tile - 3)) + 4 * blk
            idx = (tile * 2 + blk) * 4
            if idx < 16: a(f"ds_write_b128 v{AV_T}, {vr(src,4)} offset:{FRA + idx*1024}")
            else: a(f"ds_write_b128 v{AV_T+1}, {vr(src,4)} offset:{(idx-16)*1024}")
    lg0(A)
PRODS = [[(0, 3), (1, 2)], [(0, 4), (2, 4)], [(1, 3), (2, 2)], [(1, 4)]]
def kv_prod_scatter(A):
    a = A.a
    for w in range(4):
        lab = a.newlabel("Lkp")
        a(f"s_cmp_lg_u32 s24, {w}")
        a(f"s_cbranch_scc1 {lab}")
        a(f"v_add_u32 v{AV_T}, {FRB}, v{AV_L16}")
        prods = PRODS[w]
        for pi, (dt, et) in enumerate(prods):
            Dr = 208 + 16 * pi
            steps = [(sw, blk) for sw in range(4) for blk in range(2)]
            for half in range(2):
                sub = steps[4 * half:4 * half + 4]
                for k, (sw, blk) in enumerate(sub):
                    for idx, dst in (((dt * 2 + blk) * 4 + sw, 128 + 8 * k), ((et * 2 + blk) * 4 + sw, 132 + 8 * k)):
                        if idx < 16: a(f"ds_read_b128 {vr(dst,4)}, v{AV_L16} offset:{FRA + idx*1024}")
                        else: a(f"ds_read_b128 {vr(dst,4)}, v{AV_T} offset:{(idx-16)*1024}")
                for k in range(4):
                    a(f"s_waitcnt lgkmcnt({6 - 2*k})")
                    c = "0" if (half == 0 and k == 0) else vr(Dr, 16)
                    a(f"v_mfma_f32_32x32x16_bf16 {vr(Dr,16)}, {vr(128+8*k,4)}, {vr(132+8*k,4)}, {c}")
        for pi, (dt, et) in enumerate(prods):
            eg, he, dd, ad, tm = [192 + 8 * pi + i for i in range(5)]
            add = {3: 0, 4: 32, 2: 48}[et]
            a(f"v_add_u32 v{eg}, {add}, v{AV_L31}")
            a(f"v_mul_u32_u24 v{he}, 205, v{eg}")
            a(f"v_lshrrev_b32 v{he}, 12, v{he}")
            a(f"v_mul_u32_u24 v{tm}, 20, v{he}")
            a(f"v_lshlrev_b32 v{dd}, 2, v{AV_HF}")
            a(f"v_add_u32 v{dd}, {32*dt}, v{dd}")
            a(f"v_sub_u32 v{dd}, v{dd}, v{tm}")
            a(f"v_mul_u32_u24 v{ad}, 80, v{eg}")
            a(f"v_lshlrev_b32 v{tm}, 2, v{dd}")
            a(f"v_add_u32 v{ad}, v{ad}, v{tm}")
            a(f"v_add_u32 v{ad}, {KVT_P}, v{ad}")
            if et == 2:
                a(f"v_cmp_gt_u32 vcc, 16, v{AV_L31}")
                a(f"v_mov_b32 v{tm}, 0x1000")
                a("s_nop 0")
                a(f"v_cndmask_b32 v{dd}, v{dd}, v{tm}, vcc")
        a("s_nop 7")
        for pi, (dt, et) in enumerate(prods):
            Dr = 208 + 16 * pi
            eg, he, dd, ad, tm = [192 + 8 * pi + i for i in range(5)]
            for q in range(4 if dt < 2 else 2):
                a(f"v_add_u32 v{tm}, {8*q}, v{dd}")
                a(f"v_cmpx_gt_u32 vcc, 20, v{tm}")
                a(f"ds_write_b128 v{ad}, {vr(Dr+4*q,4)} offset:{32*q}")
                a("s_mov_b64 exec, -1")
        if w == 3:
            a(f"v_lshlrev_b32 v184, 2, v{AV_LANE}")
            a(f"v_add_u32 v185, {ZL}, v184")
            a(f"v_add_u32 v186, {KVT_P + 6720}, v184")
            for ww in range(4): a(f"ds_read_b32 v{187+ww}, v185 offset:{ww*256}")
            for ww in range(4): a(f"ds_read_b32 v{176+ww}, v186 offset:{ww*64}")
            lg0(A)
            a(f"v_add_f32 v187, v187, v188"); a(f"v_add_f32 v189, v189, v190"); a(f"v_add_f32 v187, v187, v189")
            a(f"v_add_f32 v176, v176, v177"); a(f"v_add_f32 v178, v178, v179"); a(f"v_add_f32 v176, v176, v178")
            a(f"v_add_u32 v185, {KVT_P + 6400}, v184")
            a(f"ds_write_b32 v185, v187")
            a("s_mov_b64 exec, 0xffff")
            a(f"ds_write_b32 v185, v176 offset:256")
            a("s_mov_b64 exec, -1")
        a.label(lab)
    lg0(A)
def kv_atomics(A):
    a = A.a
    a("s_lshl_b32 s80, s24, 8")
    a(f"v_lshlrev_b32 v{AV_T}, 2, v{AV_LANE}")
    a(f"v_add_u32 v{AV_T}, s80, v{AV_T}")
    a(f"v_add_u32 v{AV_T+1}, {KVT_P}, v{AV_T}")
    for m in range(7): a(f"ds_read_b32 v{128+m}, v{AV_T+1} offset:{m*1024}")
    lg0(A)
    for m in range(7):
        a(f"s_mov_b32 s80, {m*1024}")
        a(f"buffer_atomic_add_f32 v{128+m}, v{AV_T}, s[48:51], s80 offen")
    A.kv_at = A.vq.issue(7)

def o_flag1(A):
    a = A.a
    a("s_lshl_b32 s80, s26, 10")
    a(f"v_add_u32 v{OB}, s80, v{AV_L16}")
    a(f"buffer_load_dword v{OB+2}, v{OB}, s[92:95], 0 offen sc1")
    A.of_seq = A.vq.issue(1)
def o_fetch1(A):
    a = A.a
    A.wait_vm(A.of_seq)
    done = a.newlabel("Lfd"); l1 = a.newlabel("Lfr")
    a(f"v_cmp_ne_u32 vcc, 0, v{OB+2}")
    a("s_cmp_eq_u64 vcc, -1")
    a(f"s_cbranch_scc1 {done}")
    a(f"s_mov_b32 s70, {SPIN_MAX}")
    a.label(l1)
    a("s_sleep 1")
    a(f"buffer_load_dword v{OB+2}, v{OB}, s[92:95], 0 offen sc1")
    a("s_waitcnt vmcnt(0)")
    a(f"v_cmp_ne_u32 vcc, 0, v{OB+2}")
    a("s_cmp_eq_u64 vcc, -1")
    a(f"s_cbranch_scc1 {done}")
    a("s_sub_u32 s70, s70, 1")
    a("s_cmp_lg_u32 s70, 0")
    a(f"s_cbranch_scc1 {l1}")
    a.label(done)
    a("s_mul_i32 s80, s24, 1792")
    a(f"v_add_u32 v{OB}, s80, v{AV_L16}")
    a(f"buffer_load_dwordx4 {vr(OB+4,4)}, v{OB}, s[48:51], 0 offen sc1")
    a(f"buffer_load_dwordx4 {vr(OB+8,4)}, v{OB}, s[48:51], 0 offen offset:1024 sc1")
    A.of2_seq = A.vq.issue(2)
def o_fetch2(A):
    a = A.a
    A.wait_vm(A.of2_seq)
    a(f"v_add_u32 v{OB}, {KVC}, v{OB}")
    a(f"ds_write_b128 v{OB}, {vr(OB+4,4)}")
    a(f"s_mov_b32 s80, -1"); a("s_mov_b32 s81, 0xffff")
    a("s_mov_b64 exec, s[80:81]")
    a(f"ds_write_b128 v{OB}, {vr(OB+8,4)} offset:1024")
    a("s_mov_b64 exec, -1")
    lg0(A)
OFR4 = [(0, 0), (0, 1), (0, 2), (1, 1), (1, 2), (1, 3), (1, 4), (2, 0), (2, 1), (2, 2), (2, 3), (2, 4)]
def o_build4(A, rnd):
    a = A.a
    end = a.newlabel("Lobe")
    eg, he, dd, ad, tm, t2 = [OB + 16 + k for k in range(6)]
    V, PK = OB, OB + 8
    for w in range(4):
        i = 4 * rnd + w
        et, db = OFR4[i]
        lab = a.newlabel("Lob")
        if w < 3:
            a(f"s_cmp_lg_u32 s24, {w}")
            a(f"s_cbranch_scc1 {lab}")
        a(f"s_mov_b32 s80, {32*et}"); a(f"s_mov_b32 s81, {16*db}"); a(f"s_mov_b32 s82, {KVF + i*1024}")
        a(f"s_mov_b32 s83, {32 if et < 2 else 20}")
        if w < 3:
            a(f"s_branch {end}")
            a.label(lab)
    a.label(end)
    a(f"v_add_u32 v{eg}, s80, v{AV_L31}")
    a(f"v_mul_u32_u24 v{he}, 205, v{eg}")
    a(f"v_lshrrev_b32 v{he}, 12, v{he}")
    a(f"v_subrev_u32 v{tm}, 80, v{eg}")
    a(f"v_cmp_le_u32 vcc, 80, v{eg}")
    a(f"v_lshlrev_b32 v{dd}, 2, v{AV_HF}")
    a(f"v_add_u32 v{dd}, s81, v{dd}")
    a(f"v_cndmask_b32 v{he}, v{he}, v{tm}, vcc")
    a(f"v_mul_u32_u24 v{tm}, 20, v{he}")
    a(f"v_sub_u32 v{dd}, v{dd}, v{tm}")
    a(f"v_cmp_gt_u32 vcc, s83, v{AV_L31}")
    a(f"v_mov_b32 v{tm}, 0x1000")
    a(f"v_mul_u32_u24 v{ad}, 80, v{eg}")
    a(f"v_cndmask_b32 v{dd}, v{tm}, v{dd}, vcc")
    a(f"v_add_u32 v{t2}, 8, v{dd}")
    a(f"v_cmp_gt_u32 s[72:73], 20, v{dd}")
    a(f"v_cmp_gt_u32 s[74:75], 20, v{t2}")
    a(f"v_add_u32 v{ad}, {KVC}, v{ad}")
    a("s_nop 0")
    a(f"v_cndmask_b32 v{dd}, 0, v{dd}, s[72:73]")
    a(f"v_cndmask_b32 v{t2}, 0, v{t2}, s[74:75]")
    a(f"v_lshl_add_u32 v{dd}, v{dd}, 2, v{ad}")
    a(f"v_lshl_add_u32 v{t2}, v{t2}, 2, v{ad}")
    a(f"ds_read_b128 {vr(V,4)}, v{dd}")
    a(f"ds_read_b128 {vr(V+4,4)}, v{t2}")
    a(f"v_add_u32 v{tm}, s82, v{AV_L16}")
    lg0(A)
    for p in range(4): a(f"v_cvt_pk_bf16_f32 v{PK+p}, v{V+2*p}, v{V+2*p+1}")
    for p in range(2): a(f"v_cndmask_b32 v{PK+p}, 0, v{PK+p}, s[72:73]")
    for p in range(2): a(f"v_cndmask_b32 v{PK+2+p}, 0, v{PK+2+p}, s[74:75]")
    a(f"ds_write_b128 v{tm}, {vr(PK,4)}")
RD = 248
def o_mfma(A, et):
    a = A.a
    N, FR = OB, OB + 32
    idxs = [i for i, (e, db) in enumerate(OFR4) if e == et]
    for k, i in enumerate(idxs): a(f"ds_read_b128 {vr(FR+4*k,4)}, v{AV_L16} offset:{KVF + i*1024}")
    A.tick()
    for k, i in enumerate(idxs):
        a(f"s_waitcnt lgkmcnt({len(idxs)-1-k})")
        c = "0" if k == 0 else vr(N, 16)
        a(f"v_mfma_f32_32x32x16_bf16 {vr(N,16)}, {vr(FR+4*k,4)}, {vr(PQ+4*OFR4[i][1],4)}, {c}")
    A.tick()
    a("s_nop 7"); a("s_nop 7")
def o_rd(et, q):
    e0 = 32 * et + 8 * q
    if e0 == 16: return RD + 4
    if e0 == 56: return RD + 5
    return RD + e0 // 20
def o_scale_store(A, et):
    a = A.a
    N = OB; PKD = OB + 24
    nq = 4 if et < 2 else 2
    for q in range(nq):
        for e in range(4): a(f"v_mul_f32 v{N+4*q+e}, v{N+4*q+e}, v{o_rd(et, q)}")
    for i in range(2 * nq): a(f"v_cvt_pk_bf16_f32 v{PKD+i}, v{N+2*i}, v{N+2*i+1}")
    act_base(A, lambda: a("s_mul_i32 s82, s26, 5"))()
    if et == 2: a("s_add_u32 s81, s81, 4096")
    a(f"buffer_store_dwordx4 {vr(PKD,4)}, v{AV_L16}, s[40:43], s81 offen offset:{(2*et*1024) % 4096} {STORE_FLAGS}")
    A.vq.issue(1)
    if et < 2:
        a(f"buffer_store_dwordx4 {vr(PKD+4,4)}, v{AV_L16}, s[40:43], s81 offen offset:{(2*et+1)*1024} {STORE_FLAGS}")
        A.vq.issue(1)
    a("s_nop 1")
def o_comp_den(A):
    a = A.a
    o_mfma(A, 2)
    N = OB
    for h in range(4): a(f"v_mov_b32 v{RD+h}, v{N+8+h}")
    for h in range(4): a(f"v_mov_b32 v{OB+16+h}, v{N+8+h}")
    a("s_nop 1")
    for h in range(4): a(f"v_permlane32_swap_b32 v{RD+h}, v{OB+16+h}")
    a("s_nop 1")
    for h in range(4): a(f"v_add_f32 v{RD+h}, s99, v{RD+h}")
    for h in range(4): a(f"v_rcp_f32 v{RD+h}, v{RD+h}")
    a(f"v_cmp_eq_u32 vcc, 1, v{AV_HF}")
    a("s_nop 1")
    a(f"v_cndmask_b32 v{RD+4}, v{RD}, v{RD+1}, vcc")
    a(f"v_cndmask_b32 v{RD+5}, v{RD+2}, v{RD+3}, vcc")
    o_scale_store(A, 2)
def o_comp(A, et):
    o_mfma(A, et); o_scale_store(A, et)

COST = dict(valu=6, trans=11, ds=10, dsw=40, vm=35, salu=3)
def instr_cost(line):
    s = line.strip()
    if not s or s.endswith(":") or s.startswith(";"): return 0
    op = s.split()[0]
    if op.startswith("v_mfma"): return 25
    if op.startswith("v_exp") or op.startswith("v_rcp") or op.startswith("v_rsq"): return COST['trans']
    if op.startswith("v_"): return COST['valu']
    if op.startswith("ds_write") or op.startswith("ds_add"): return COST['dsw']
    if op.startswith("ds_"): return COST['ds']
    if op.startswith("buffer_"): return COST['vm']
    if op == "s_swappc_b64":
        return {"56": 290, "58": 130, "60": 300}[s.split("s[")[2].split(":")[0]]
    if op == "s_waitcnt": return 60 if "lgkmcnt(0)" in s else 10
    if op == "s_nop": return 4 * (int(s.split()[1]) + 1)
    return COST['salu']
def seg_stamp(a, k):
    if OPT.get("segstamp") and k < 64:
        a("s_memtime s[100:101]")
        a("s_waitcnt lgkmcnt(0)")
        a(f"v_writelane_b32 v7, s100, {k}")
class Prog:
    def __init__(self, A, cap, lead):
        self.A = A; self.a = A.a; self.P = A.P; self.NS = A.P.ns
        self.k = 0; self.mark = len(self.a.L); self.used = 0
        self.cap = cap; self.lead = lead; self.nxt = 0
        self.log = {}; self.pend_rd = []; self.hold = False; self.kend = 0
        A.tick = self.tick
    def elapsed(self):
        for l in self.a.L[self.mark:]: self.used += instr_cost(l)
        self.mark = len(self.a.L)
        return self.used
    def queue(self):
        k = self.k
        while self.nxt <= min(k + self.lead(k), self.NS - 1) and self.P.st[self.nxt]['earliest'] <= k:
            self.A.queue_stage(self.nxt); self.nxt += 1
    def close(self):
        A = self.A; k = self.k
        A.flush()
        if k < self.NS: A.wait_vm(A.stage_seq[k])
        if k < 31: seg_stamp(self.a, k)
        self.a("s_barrier")
        if k < 31: seg_stamp(self.a, 32 + k)
        self.log.setdefault(k, []).append(f"[{self.elapsed()}]")
        self.k += 1; self.used = 0; self.mark = len(self.a.L)
        self.queue()
        self.try_reads()
    def try_reads(self):
        while self.pend_rd and self.pend_rd[0][0] <= self.k:
            lo, hi, name, fn = self.pend_rd.pop(0)
            assert self.k <= hi, (name, self.k, lo, hi)
            self.log.setdefault(self.k, []).append(name)
            fn()
    def tick(self):
        self.try_reads()
        if self.A.dmaq: self.A.dmaq.pop(0)()
        if self.k < self.NS and self.elapsed() >= self.cap(self.k) and not self.hold: self.close()
    def run(self, name, fn, lo=0, hi=99):
        while self.k < lo: self.close()
        assert self.k <= hi, (name, self.k, lo, hi)
        self.log.setdefault(self.k, []).append(name)
        fn()
        self.kend = self.k
        kend = self.k
        self.tick()
        return kend

def gen_aux(a, typ):
    A = Aux(a, typ); P = A.P; NS = P.ns; W = P.win
    aux_setup(a, typ)
    subs_addr(a, NAME[0])
    if OPT.get("segstamp"): a("v_writelane_b32 v7, s100, 63")
    a(f"s_mov_b32 s98, {fbits(LOG2E)}")
    a(f"s_mov_b32 s99, {fbits(1e-6)}")
    def cap(k):
        if k <= 5: return OPT.get("cap0", 800)
        return OPT.get("cap1", 480)
    LEAD0 = OPT.get("lead0", 2)
    R = Prog(A, cap, lambda k: LEAD0 if k < 5 else 4)
    a(f"s_mov_b32 s97, {fbits(-LOG2E)}")
    for s_ in range(2): A.issue_stage(s_)
    R.nxt = 2
    R.close()
    run = R.run
    def zero_z():
        a(f"v_lshlrev_b32 v{AV_T}, 2, v{AV_LANE}")
        a(f"v_add_u32 v{AV_T}, {ZL}, v{AV_T}")
        a(f"v_mov_b32 v{AV_T+1}, 0")
        a(f"ds_write_b32 v{AV_T}, v{AV_T+1}")
        a(f"ds_write_b32 v{AV_T}, v{AV_T+1} offset:256")
        lg0(A)
    run("flg", lambda: flg_srd(A))
    def rd(key, buf, slot, nq=4):
        lo, hi = W[key]
        run(f"rd{key[0]}{key[1]}", lambda: mo_read(A, buf, slot, nq), lo=lo, hi=hi)
    p0, p1 = P.last_pos
    TB = [T0BUF, T1BUF]
    def sig_tile(key, buf, tau):
        rd(key, buf, tau)
        for h in range(2): run(f"s{key[0]}{tau}{h}", lambda: mo_sig(A, 2 * tau + h))
    def h_tile(key, buf, slot, sig_tau, blk, bo):
        rd(key, buf, slot)
        for h in range(2): run(f"h{key[0]}{slot}{h}", lambda: mo_h(A, 2 * slot + h, True, blk, bo + h))
    if typ == "Q":
        blk0 = act_base(A, lambda: (a("s_lshl_b32 s82, s26, 3"), a("s_add_u32 s82, s82, 40")))
        blk1 = act_base(A, lambda: (a("s_lshl_b32 s82, s26, 3"), a("s_add_u32 s82, s82, 44")))
        rd((0, 2), EBUF, 1, nq=2); run("p02", lambda: mo_phi(A, 2, PQ + 16))
        rd((0, 0), T0BUF, 0)
        for h in range(2): run(f"p00{h}", lambda: mo_phi(A, h, PQ + 4 * h))
        rd((0, 1), T1BUF, 1)
        for h in range(2): run(f"p01{h}", lambda: mo_phi(A, 2 + h, PQ + 8 + 4 * h))
        for tau in range(2): sig_tile((1, tau), TB[tau], tau)
        h_tile((2, 0), T0BUF, 0, 0, blk0, 0)
        O0 = OPT.get("o0", 19)
        run("ofl", lambda: o_flag1(A), lo=O0)
        h_tile((2, 1), T1BUF, 1, 1, blk0, 2)
        kk = run("of1", lambda: o_fetch1(A), lo=O0 + 1)
        kk = run("of2", lambda: o_fetch2(A), lo=kk + 1)
        R.hold = True
        for r in range(3): kk = run(f"ob{r}", lambda: o_build4(A, r), lo=kk + (1 if r == 0 else 0))
        lg0(A)
        R.hold = False
        sig_tile((3, 0), T0BUF, 0)
        run("ocd", lambda: o_comp_den(A), lo=kk + 1)
        run("oc0", lambda: o_comp(A, 0))
        sig_tile((3, 1), T1BUF, 1)
        run("oc1", lambda: o_comp(A, 1))
        h_tile((4, 0), p0, 0, 0, blk1, 0)
        h_tile((4, 1), p1, 1, 1, blk1, 2)
    else:
        def pr(key, kind, dst, slot):
            for h in range(2): run(f"p{key[0]}{key[1]}{h}", lambda: mo_kv(A, 2 * slot + h, h, kind, dst, key[1]))
        rd((0, 0), T0BUF, 0); rd((0, 1), T1BUF, 1)
        pr((0, 0), "k", PKF, 0)
        rd((0, 2), EBUF, 0)
        pr((0, 1), "k", PKF + 8, 1)
        pr((0, 2), "kv", PKF + 16, 0)
        rd((1, 0), T0BUF, 0); rd((1, 1), T1BUF, 1)
        pr((1, 0), "v", VF, 0); pr((1, 1), "v", VF + 8, 1)
        kk = run("kvw", lambda: (lg0(A), kv_write_frags(A)))
        for tau in range(2):
            lo_, hi_ = W[(2, tau)]
            R.pend_rd.append((lo_, hi_, f"rd2{tau}", (lambda tau=tau: mo_read(A, TB[tau], tau))))
        R.hold = True
        kk = run("kvp", lambda: kv_prod_scatter(A), lo=kk + 1)
        R.hold = False
        kk = run("kva", lambda: kv_atomics(A), lo=kk + 1)
        def kvd():
            A.wait_vm(A.kv_at)
            a("s_lshl_b32 s80, s26, 10"); a("s_lshl_b32 s81, s25, 6"); a("s_add_u32 s80, s80, s81")
            a("s_lshl_b32 s81, s24, 4"); a("s_add_u32 s80, s80, s81")
            store_flag(A); A.vq.issue(1)
        run("kvd", kvd, lo=kk + OPT.get("kvdgap", 2))
        blk0 = act_base(A, lambda: (a("s_lshl_b32 s82, s26, 2"), a("s_add_u32 s82, s82, 104")))
        def blkh_code():
            a("s_lshl_b32 s82, s26, 1"); a("s_add_u32 s82, s82, 136")
            a("s_cmp_ge_u32 s26, 6")
            a("s_cselect_b32 s82, 0x100000, s82")
        blkh = act_base(A, blkh_code)
        for tau in range(2):
            while any(n == f"rd2{tau}" for _, _, n, _ in R.pend_rd): R.close()
            for h in range(2): run(f"s2{tau}{h}", lambda: mo_sig(A, 2 * tau + h))
        h_tile((3, 0), T0BUF, 0, 0, blk0, 0)
        h_tile((3, 1), T1BUF, 1, 1, blk0, 2)
        sig_tile((4, 0), p0, 0)
        h_tile((4, 1), p1, 0, 0, blkh, 0)
    while R.k <= NS: R.close()
    if OPT.get("verbose"):
        for k in sorted(R.log): print(typ, k, R.log[k])
    if OPT.get("segstamp"):
        a(f"s_add_u32 s64, s22, {WS_STAMP}"); a("s_addc_u32 s65, s23, 0"); a("s_mov_b32 s66, 0x100000"); a("s_mov_b32 s67, 0x00020000")
        a("s_lshl_b32 s82, s2, 2"); a("s_add_u32 s82, s82, s24"); a("s_lshl_b32 s82, s82, 8")
        a(f"v_lshlrev_b32 v6, 2, v{AV_LANE}")
        a("buffer_store_dword v7, v6, s[64:67], s82 offen")

NAME = ['front_kernel']
def gen_front(name="front_kernel", stamp=0, mapv=None):
    mapv = OPT.get("mapv", 0) if mapv is None else mapv
    NAME[0] = name
    a = Asm(); a.L.append(head(name))
    if stamp: a("s_memrealtime s[100:101]")
    if OPT.get("segstamp"): a("s_memtime s[100:101]")
    a("s_cmp_ge_u32 s2, 256")
    a(f"s_cbranch_scc1 {name}_end")
    a("s_load_dwordx4 s[4:7], s[0:1], 0")
    a("s_load_dwordx2 s[8:9], s[0:1], 16")
    a("s_load_dwordx4 s[12:15], s[0:1], 32")
    a("s_load_dwordx2 s[16:17], s[0:1], 48")
    a("s_load_dwordx4 s[20:23], s[0:1], 64")
    a("v_lshrrev_b32 v1, 6, v0")
    a("s_and_b32 s83, s2, 7")
    a("v_readfirstlane_b32 s3, v1")
    a("s_lshr_b32 s84, s2, 3")
    if mapv == 0:
        a("s_and_b32 s25, s83, 1"); a("s_lshl_b32 s25, s25, 3"); a("s_and_b32 s85, s84, 7"); a("s_add_u32 s25, s25, s85")
        a("s_lshr_b32 s85, s83, 1"); a("s_lshr_b32 s86, s84, 3")
        a("s_lshr_b32 s27, s86, 1")
        a("s_lshl_b32 s26, s85, 1"); a("s_and_b32 s86, s86, 1"); a("s_add_u32 s26, s26, s86")
    else:
        a("s_and_b32 s25, s83, 3"); a("s_lshl_b32 s25, s25, 2"); a("s_and_b32 s85, s84, 3"); a("s_add_u32 s25, s25, s85")
        a("s_lshr_b32 s85, s83, 2"); a("s_lshr_b32 s86, s84, 2")
        a("s_lshr_b32 s27, s86, 2")
        a("s_lshl_b32 s26, s85, 2"); a("s_and_b32 s86, s86, 3"); a("s_add_u32 s26, s26, s86")
    a("s_lshl_b32 s19, s27, 3")
    a("s_add_u32 s19, s19, s26")
    a("s_and_b32 s24, s3, 3")
    a("s_cmp_ge_u32 s3, 4")
    a(f"s_cbranch_scc1 {name}_aux")
    def fin_stamp():
        if stamp:
            a("s_waitcnt vmcnt(0) lgkmcnt(0)")
            a("s_memrealtime s[80:81]")
            a("s_waitcnt lgkmcnt(0)")
            a(f"s_add_u32 s64, s22, {WS_STAMP}"); a("s_addc_u32 s65, s23, 0"); a("s_mov_b32 s66, 65536"); a("s_mov_b32 s67, 0x00020000")
            a("s_lshl_b32 s82, s2, 3"); a("s_add_u32 s82, s82, s3"); a("s_lshl_b32 s82, s82, 4")
            a("v_mov_b32 v0, s100"); a("v_mov_b32 v1, s101"); a("v_mov_b32 v2, s80"); a("v_mov_b32 v3, s81"); a("v_mov_b32 v4, s82")
            a("s_mov_b64 exec, 1")
            a("buffer_store_dwordx4 v[0:3], v4, s[64:67], 0 offen")
    a("s_waitcnt lgkmcnt(0)")
    compute_setup(a)
    a("s_cmp_eq_u32 s27, 1")
    a(f"s_cbranch_scc1 {name}_ckv")
    for typ in ("Q", "KV"):
        if typ == "KV": a.label(f"{name}_ckv")
        gen_compute(a, typ)
        fin_stamp()
        a("s_endpgm")
    a.label(f"{name}_aux")
    a("s_waitcnt lgkmcnt(0)")
    if OPT.get("segstamp"):
        a("s_memtime s[18:19]") if False else None
        a("s_memtime s[96:97]"); a("s_waitcnt lgkmcnt(0)"); a("v_writelane_b32 v7, s96, 62")
    srd(a, 28, 6, 7, D * 3 * D * 2)
    srd(a, 32, 12, 13, D * F * 2)
    srd(a, 36, 14, 15, D * F * 2)
    srd(a, 40, 22, 23, ACT_BYTES, WS_ACT)
    a("s_lshl_b32 s69, s26, 13")
    a(f"s_add_u32 s69, s69, {WS_KV}")
    a("s_add_u32 s48, s22, s69"); a("s_addc_u32 s49, s23, 0"); a(f"s_mov_b32 s50, {KV_STRIDE}"); a("s_mov_b32 s51, 0x00020000")
    a("s_cmp_eq_u32 s27, 1")
    a(f"s_cbranch_scc1 {name}_akv")
    for typ in ("Q", "KV"):
        if typ == "KV": a.label(f"{name}_akv")
        gen_aux(a, typ)
        fin_stamp()
        a("s_endpgm")
    a.label(f"{name}_end")
    a("s_endpgm")
    gen_subs(a, name)
    return a.text() + kd(name, 256, 256), LDS_BYTES
```

```python
from asmlib import *
from layout import *
import struct
def fbits(x): return "0x%08x" % struct.unpack("<I", struct.pack("<f", x))[0]

def red32(a, v, t):
    for m in ("quad_perm:[1,0,3,2]", "quad_perm:[2,3,0,1]", "row_half_mirror", "row_mirror"):
        a("s_nop 1")
        a(f"v_add_f32_dpp v{v}, v{v}, v{v} {m} row_mask:0xf bank_mask:0xf")
    a(f"v_mov_b32 v{t}, v{v}")
    a("s_nop 1")
    a(f"v_permlane16_swap_b32 v{v}, v{t}")
    a("s_nop 1")
    a(f"v_add_f32 v{v}, v{v}, v{t}")

def gen_prep(name="prep_kernel", stamp=0):
    a = Asm(); a.L.append(head(name))
    if stamp: a("s_memrealtime s[100:101]")
    a("s_cmp_ge_u32 s2, 256")
    a(f"s_cbranch_scc1 {name}_end")
    a("s_load_dwordx2 s[4:5], s[0:1], 0")
    a("s_load_dwordx2 s[8:9], s[0:1], 16")
    a("s_load_dwordx2 s[16:17], s[0:1], 48")
    a("s_load_dwordx2 s[22:23], s[0:1], 72")
    a("v_lshrrev_b32 v1, 6, v0")
    a("v_and_b32 v15, 63, v0")
    a("v_readfirstlane_b32 s24, v1")
    a("v_lshrrev_b32 v23, 5, v15")
    a("v_and_b32 v24, 31, v15")
    a("v_lshlrev_b32 v14, 4, v15")
    a("s_lshl_b32 s80, s2, 3")
    a("s_lshl_b32 s81, s24, 1")
    a("s_add_u32 s80, s80, s81")
    a("v_add_u32 v30, s80, v23")
    a("v_mul_u32_u24 v31, 1280, v30")
    a("v_lshlrev_b32 v32, 4, v24")
    a("v_add_u32 v31, v31, v32")
    a("v_cmp_gt_u32 vcc, 16, v24")
    a("v_mov_b32 v33, 0x7f000000")
    a("s_lshl_b32 s60, s24, 8")
    a("s_add_u32 s60, s60, s2")
    a("s_mul_i32 s61, s60, 0x199a")
    a("s_lshr_b32 s61, s61, 16")
    a("s_mul_i32 s62, s61, 10")
    a("s_sub_u32 s62, s60, s62")
    a("v_cndmask_b32 v32, v33, v31, vcc")
    a("s_waitcnt lgkmcnt(0)")
    srd(a, 28, 4, 5, S * D * 2)
    a("buffer_load_dwordx4 v[36:39], v31, s[28:31], 0 offen")
    a("buffer_load_dwordx4 v[40:43], v31, s[28:31], 0 offen offset:512")
    a("buffer_load_dwordx4 v[44:47], v32, s[28:31], 0 offen offset:1024")
    a("s_mul_i32 s97, s61, 40")
    a("s_lshl_b32 s83, s62, 2")
    a("s_add_u32 s97, s97, s83")
    a("s_lshl_b32 s97, s97, 10")
    a("s_cmp_ge_u32 s60, 740")
    a("s_cselect_b32 s97, 0x7f000000, s97")
    srd(a, 56, 8, 9, D * D * 2)
    a("s_lshl_b32 s83, s61, 5")
    lab = a.newlabel("Lw2")
    a("s_cmp_lt_u32 s61, 20")
    a(f"s_cbranch_scc1 {lab}")
    srd(a, 56, 16, 17, F * D * 2)
    a("s_sub_u32 s83, s83, 640")
    a.label(lab)
    a("s_mul_i32 s83, s83, 1280")
    a("s_lshl_b32 s62, s62, 7")
    a("s_add_u32 s83, s83, s62")
    a("s_cmp_ge_u32 s60, 740")
    a("s_cselect_b32 s83, 0x7f000000, s83")
    a("v_lshrrev_b32 v96, 3, v15")
    a("v_mul_u32_u24 v96, 1280, v96")
    a("v_and_b32 v97, 7, v15")
    a("v_lshlrev_b32 v97, 4, v97")
    a("v_add_u32 v96, v96, v97")
    a("s_lshl_b32 s69, s24, 12")
    a("s_mov_b32 m0, s69")
    a("s_nop 0")
    for i in range(4):
        a("buffer_load_dwordx4 v96, s[56:59], s83 offen lds")
        if i < 3:
            a("s_add_u32 m0, m0, 1024")
            a(f"s_add_u32 s83, s83, {8*1280}")
    srd(a, 40, 22, 23, XNP_BYTES, WS_XNP)
    srd(a, 44, 22, 23, W2P_BYTES, WS_W2P)
    srd(a, 48, 22, 23, KV_BYTES, WS_KV)
    srd(a, 52, 22, 23, FLG_BYTES, WS_FLG)
    for i in range(4): a(f"v_mov_b32 v{100+i}, 0")
    l1 = a.newlabel("Lz")
    a("s_cmp_ge_u32 s2, 8")
    a(f"s_cbranch_scc1 {l1}")
    a("s_lshl_b32 s70, s2, 13"); a("s_lshl_b32 s71, s24, 11"); a("s_add_u32 s70, s70, s71")
    a("buffer_store_dwordx4 v[100:103], v14, s[48:51], s70 offen")
    a("buffer_store_dwordx4 v[100:103], v14, s[48:51], s70 offen offset:1024")
    a("s_lshl_b32 s70, s2, 10"); a("s_lshl_b32 s71, s24, 8"); a("s_add_u32 s70, s70, s71")
    a("s_mov_b64 exec, 0xffff")
    a("buffer_store_dwordx4 v[100:103], v14, s[52:55], s70 offen")
    a("s_mov_b64 exec, -1")
    a.label(l1)
    a("s_waitcnt vmcnt(4)") if False else None
    a("s_waitcnt vmcnt(0)")
    X = 50
    for i in range(12):
        a(f"v_lshlrev_b32 v{X+2*i}, 16, v{36+i}")
        a(f"v_and_b32 v{X+2*i+1}, 0xffff0000, v{36+i}")
    s0, s1 = 80, 81
    a(f"v_add_f32 v{s0}, v{X}, v{X+1}")
    a(f"v_add_f32 v{s1}, v{X+2}, v{X+3}")
    for i in range(4, 24, 2):
        a(f"v_add_f32 v{s0}, v{s0}, v{X+i}")
        a(f"v_add_f32 v{s1}, v{s1}, v{X+i+1}")
    a(f"v_add_f32 v{s0}, v{s0}, v{s1}")
    red32(a, s0, s1)
    a(f"v_mul_f32 v{s0}, {fbits(1/640)}, v{s0}")
    for i in range(24): a(f"v_sub_f32 v{X+i}, v{X+i}, v{s0}")
    a(f"v_cmp_gt_u32 vcc, 16, v24")
    q0, q1 = 82, 83
    a(f"v_mul_f32 v{q0}, v{X}, v{X}")
    a(f"v_mul_f32 v{q1}, v{X+1}, v{X+1}")
    for i in range(2, 16, 2):
        a(f"v_fmac_f32 v{q0}, v{X+i}, v{X+i}")
        a(f"v_fmac_f32 v{q1}, v{X+i+1}, v{X+i+1}")
    for i in range(16, 24): a(f"v_cndmask_b32 v{X+i}, 0, v{X+i}, vcc")
    for i in range(16, 24, 2):
        a(f"v_fmac_f32 v{q0}, v{X+i}, v{X+i}")
        a(f"v_fmac_f32 v{q1}, v{X+i+1}, v{X+i+1}")
    a(f"v_add_f32 v{q0}, v{q0}, v{q1}")
    red32(a, q0, q1)
    a(f"v_mul_f32 v{q0}, {fbits(1/640)}, v{q0}")
    a(f"v_add_f32 v{q0}, {fbits(1e-5)}, v{q0}")
    a(f"v_rsq_f32 v{q0}, v{q0}")
    a("s_nop 0")
    for i in range(24): a(f"v_mul_f32 v{X+i}, v{X+i}, v{q0}")
    for i in range(12): a(f"v_cvt_pk_bf16_f32 v{36+i}, v{X+2*i}, v{X+2*i+1}")
    a("v_lshrrev_b32 v84, 5, v30")
    a("v_mul_u32_u24 v84, 40960, v84")
    a("v_and_b32 v85, 31, v30")
    a("v_lshlrev_b32 v85, 4, v85")
    a("v_add_u32 v84, v84, v85")
    a("v_lshrrev_b32 v85, 1, v24")
    a("v_lshlrev_b32 v85, 10, v85")
    a("v_add_u32 v84, v84, v85")
    a("v_and_b32 v85, 1, v24")
    a("v_lshlrev_b32 v85, 9, v85")
    a("v_add_u32 v84, v84, v85")
    a("v_cmp_gt_u32 vcc, 16, v24")
    a("v_mov_b32 v86, 0x7f000000")
    a("s_mov_b32 s70, 16384"); a("s_mov_b32 s71, 32768")
    a("v_cndmask_b32 v86, v86, v84, vcc")
    a("buffer_store_dwordx4 v[36:39], v84, s[40:43], 0 offen")
    a("buffer_store_dwordx4 v[40:43], v84, s[40:43], s70 offen")
    a("buffer_store_dwordx4 v[44:47], v86, s[40:43], s71 offen")
    a("v_lshrrev_b32 v96, 5, v15")
    a("v_lshlrev_b32 v96, 4, v96")
    a("v_bfe_u32 v97, v15, 4, 1")
    a("v_lshlrev_b32 v97, 2, v97")
    a("v_add_u32 v96, v96, v97")
    a("v_bfe_u32 v97, v15, 2, 2")
    a("v_add_u32 v96, v96, v97")
    a("v_lshlrev_b32 v96, 7, v96")
    a("v_and_b32 v97, 3, v15")
    a("v_lshlrev_b32 v97, 3, v97")
    a("v_add_u32 v96, v96, v97")
    a("v_add_u32 v96, s69, v96")
    for nt in range(4):
        a(f"ds_read_b64_tr_b16 v[{104+4*nt}:{105+4*nt}], v96 offset:{nt*32}")
        a(f"ds_read_b64_tr_b16 v[{106+4*nt}:{107+4*nt}], v96 offset:{nt*32+1024}")
    a("s_waitcnt lgkmcnt(0)")
    for nt in range(4):
        a(f"buffer_store_dwordx4 v[{104+4*nt}:{107+4*nt}], v14, s[44:47], s97 offen offset:{nt*1024}")
    if stamp:
        a("s_lshl_b32 s3, s24, 0")
        a("s_waitcnt vmcnt(0) lgkmcnt(0)")
        a("s_memrealtime s[80:81]")
        a("s_waitcnt lgkmcnt(0)")
        a(f"s_add_u32 s64, s22, {WS_STAMP + 2*65536}"); a("s_addc_u32 s65, s23, 0"); a("s_mov_b32 s66, 65536"); a("s_mov_b32 s67, 0x00020000")
        a("s_lshl_b32 s82, s2, 2"); a("s_add_u32 s82, s82, s24"); a("s_lshl_b32 s82, s82, 4")
        a("v_mov_b32 v0, s100"); a("v_mov_b32 v1, s101"); a("v_mov_b32 v2, s80"); a("v_mov_b32 v3, s81"); a("v_mov_b32 v4, s82")
        a("s_mov_b64 exec, 1")
        a("buffer_store_dwordx4 v[0:3], v4, s[64:67], 0 offen")
    a.label(f"{name}_end")
    a("s_endpgm")
    return a.text() + kd(name, 128, 128), 16384
```

```python
S, D, F = 2048, 640, 1728
NBLK = 148
WS_ACT = 0
ACT_BYTES = 64 * NBLK * 1024
WS_W2P = 0xA00000
NT = 74
W2P_BYTES = NT * 40 * 1024
WS_KV = 0xE00000
KV_STRIDE = 8192
KV_BYTES = 8 * KV_STRIDE
WS_STATS = 0xE20000
STATS_BYTES = 2048 * 16
WS_CSP = 0xE30000
CSP_BYTES = 3 * 5376 * 16
WS_FLG = 0xE80000
FLG_BYTES = 16384
WS_XNP = 0x1000000
XNP_BYTES = 64 * 40 * 1024
```

```python
import sys
import gen_a8 as GA, gen_b, gen_k0
NAME = "parallel_sum__linear_attn_block__glu_gated_glu__prompt"
def build_text(seq="PAB", **kw):
    tx0, lds0 = gen_k0.gen_prep("prep_kernel", code_pf=("front_kernel", "code_end") if kw.get("pf", True) else None, w_pf=kw.get("wpf", False))
    txa, ldsa = GA.gen_front("front_kernel")
    txb, ldsb = gen_b.gen_final("final_kernel")
    ln = {"P": f"; @launch kernel=prep_kernel grid=(256,1,1) block=(256,1,1) lds={lds0}",
          "A": f"; @launch kernel=front_kernel grid=(256,1,1) block=(512,1,1) lds={ldsa}",
          "B": f"; @launch kernel=final_kernel grid=(256,1,1) block=(256,1,1) lds={ldsb}"}
    hdr = f"""; {NAME}: LN -> [linear attention | GLU] -> output projection + residual.
; prep_kernel : xn = LayerNorm(x) (packed MFMA fragments), packs [Wo;Wd], zeroes the kv accumulators.
; front_kernel: xn @ [Wq|Wk|Wv|Wg|Wu] with phi / sigmoid epilogues, kv reduction, o = (pq kv)/(pq z).
; final_kernel: out = x + [o|h] @ [Wo;Wd]
""" + "\n".join(ln[c] for c in seq) + """
.amdgcn_target "amdgcn-amd-amdhsa--gfx950"
.text
"""
    i = txb.index('.section .rodata')
    txb = txb[:i] + 'code_end:\n' + txb[i:]
    return hdr + tx0 + txa + txb
if __name__ == "__main__":
    out = sys.argv[1] if len(sys.argv) > 1 else f"cdna_kernels/{NAME}.s"
    seq = sys.argv[2] if len(sys.argv) > 2 else "PAB"
    open(out, "w").write(build_text(seq, wpf=(len(sys.argv) > 3)))
    print("wrote", out)
```

```python
from asmlib import *
from layout import *
import struct

RING0 = 0
XTRA = 114688
ZL = 162816
LDS_BYTES = 163840
RING_LIM = {0: 98304, 1: 114688}
FR = XTRA
KVT_P = 155648
KVC = XTRA
KVF = XTRA + 8192
PD, NB = 4, 5
OPT = dict(mapv=0)
SPIN_MAX = 20000
STORE_FLAGS = ""
def fbits(x): return "0x%08x" % struct.unpack("<I", struct.pack("<f", x))[0]
LOG2E = 1.4426950408889634

class Q:
    def __init__(self): self.n = 0
    def issue(self, k=1):
        self.n += k
        return self.n
    def left(self, seq): return self.n - seq

def passes_for(typ):
    if typ == "Q": return [("q", 3, True), ("G", 2, True), ("U", 2, True), ("G", 2, True), ("U", 2, True)]
    return [("k", 3, False), ("v", 2, False), ("G", 2, True), ("U", 2, True), ("H", 2, True)]

class Plan:
    def __init__(self, typ):
        self.typ = typ
        self.ps = passes_for(typ)
        st = []
        for X in range(5):
            for b in range(5): st.append(dict(X=X, t0=8 * b, nt=8, size=24576 if X == 0 else 16384))
        p = RING0
        for s in st:
            lim = RING0 + RING_LIM[min(s['X'], 1)]
            if p + s['size'] > lim: p = RING0
            s['pos'] = p; p += s['size']
        for i, s in enumerate(st):
            e = 0
            for i2 in range(i):
                s2 = st[i2]
                if s2['pos'] < s['pos'] + s['size'] and s['pos'] < s2['pos'] + s2['size']: e = max(e, i2 + 3)
            s['earliest'] = e
        self.st = st; self.ns = len(st)
        items = []
        for si, s in enumerate(st):
            X = s['X']; T = self.ps[X][1]
            if X == 1 and s['t0'] == 0:
                for tau in range(T):
                    for i in range(s['nt']): items.append((X, s['t0'] + i, tau, si))
            else:
                for i in range(s['nt']):
                    for tau in range(T): items.append((X, s['t0'] + i, tau, si))
        self.items = items
        self.bpos = {0: -1}
        for g in range(len(items) - PD):
            if items[g + PD][3] != items[g + PD - 1][3]: self.bpos[items[g + PD][3]] = g
        last = {}
        for f, (X, t, tau, si) in enumerate(items):
            if t == 39: last[(X, tau)] = f
        self.last = last
        self.endp = {X: max(last[(X, tau)] for tau in range(self.ps[X][1])) for X in range(5)}
    def seg_after(self, f):
        return min(b for b, g in self.bpos.items() if g >= f + PD + 2) + 1

VA = 0
SA, SB, BBUF = 160, 192, 224
V_AD0, V_AD1, V_TR20, V_L16 = 244, 245, 246, 247
TP = 248
V_FW, V_Z, V_ZT, V_TR3 = 252, 253, 254, 255

def acc_regs(typ, X, tau):
    if X == 0: return [SA, SA + 16, SB][tau]
    if X == 1: return [SB + 16, SB][tau]
    return (SB if X % 2 == 1 else SA) + 16 * tau

class Compute:
    def __init__(self, a, typ):
        self.a = a; self.typ = typ
        self.P = Plan(typ)
        self.lq = Q(); self.pend = {}
    def set_addr(self, si):
        a = self.a; s = self.P.st[si]; T = self.P.ps[s['X']][1]
        if T == 2:
            a(f"v_add_u32 v{V_AD0}, {s['pos']}, v{V_TR20}")
            a(f"v_xor_b32 v{V_AD1}, 64, v{V_AD0}")
        else:
            a(f"v_add_u32 v{V_AD0}, {s['pos']}, v{V_TR3}")
    def reads(self, f):
        a = self.a; X, t, tau, si = self.P.items[f]; T = self.P.ps[X][1]
        b = BBUF + 4 * (f % NB)
        tl = t - self.P.st[si]['t0']
        if T == 2: reg, o1, o2 = (V_AD0 if tau == 0 else V_AD1), tl * 2048, tl * 2048 + 512
        else: reg, o1, o2 = V_AD0, tl * 3072 + tau * 64, tl * 3072 + tau * 64 + 768
        a(f"ds_read_b64_tr_b16 {vr(b,2)}, v{reg} offset:{o1}")
        a(f"ds_read_b64_tr_b16 {vr(b+2,2)}, v{reg} offset:{o2}")
        self.pend[f] = self.lq.issue(2)
    def mfma(self, f):
        a = self.a; X, t, tau, si = self.P.items[f]; sw = self.P.ps[X][2]
        if OPT.get("w2") and f % 2 == 1 and f + 0 in self.pend and getattr(self, "covered", -1) >= f: pass
        else:
            tgt = f + 1 if (OPT.get("w2") and f + 1 in self.pend and f % 2 == 0) else f
            a(f"s_waitcnt lgkmcnt({min(self.lq.left(self.pend[tgt]), 15)})")
            self.covered = tgt
        acc = vr(acc_regs(self.typ, X, tau), 16)
        c = "0" if t == 0 else acc
        w = vr(BBUF + 4 * (f % NB), 4); x = vr(VA + 4 * t, 4)
        if sw: a(f"v_mfma_f32_32x32x16_bf16 {acc}, {w}, {x}, {c}")
        else: a(f"v_mfma_f32_32x32x16_bf16 {acc}, {x}, {w}, {c}")

def a_load(a, t):
    if t % 4 == 0 and t > 0: a("s_add_u32 s72, s72, 4096")
    a(f"buffer_load_dwordx4 {vr(VA+4*t,4)}, v{V_L16}, s[28:31], s72 offen offset:{(t%4)*1024}")

def f_sig(base, n=16):
    g = []
    for q in range(0, n, 4):
        r = range(base + q, base + q + 4)
        g.append([f"v_mul_f32 v{i}, s97, v{i}" for i in r])
        g.append([f"v_exp_f32 v{i}, v{i}" for i in r][:2]); g.append([f"v_exp_f32 v{i}, v{i}" for i in r][2:])
        g.append([f"v_add_f32 v{i}, 1.0, v{i}" for i in r])
        g.append([f"v_rcp_f32 v{i}, v{i}" for i in r][:2]); g.append([f"v_rcp_f32 v{i}, v{i}" for i in r][2:])
    return split2(g)
def f_phi(base, n, masked=False):
    g = []
    for q in range(0, n, 4):
        r = list(range(base + q, base + q + 4)); t = [TP + k for k in range(4)]
        steps = [[f"v_mul_f32 v{t[k]}, s98, v{r[k]}" for k in range(4)],
                 [f"v_exp_f32_e64 v{t[k]}, v{t[k]} clamp" for k in range(2)],
                 [f"v_exp_f32_e64 v{t[k]}, v{t[k]} clamp" for k in range(2, 4)],
                 [f"v_add_f32 v{t[k]}, s99, v{t[k]}" for k in range(4)],
                 [f"v_add_f32 v{r[k]}, v{r[k]}, v{t[k]}" for k in range(4)],
                 [f"v_max_f32 v{r[k]}, v{r[k]}, v{t[k]}" for k in range(4)]]
        if masked:
            for k in (4, 5): steps[k] = ["s_mov_b64 exec, s[76:77]"] + steps[k] + ["s_mov_b64 exec, -1"]
            g += split2(steps[:4]) + steps[4:]
        else: g += split2(steps)
    return g
def split2(groups):
    out = []
    for g in groups:
        for i in range(len(g)): out.append(g[i:i+1])
    return out
def f_pack8(b):
    return [[f"v_cvt_pk_bf16_f32 v{b}, v{b}, v{b+1}", f"v_cvt_pk_bf16_f32 v{b+1}, v{b+2}, v{b+3}"],
            [f"v_cvt_pk_bf16_f32 v{b+2}, v{b+4}, v{b+5}", f"v_cvt_pk_bf16_f32 v{b+3}, v{b+6}, v{b+7}"]]
def f_gstore(b, srd_, soff_code, imm):
    return [soff_code + [f"buffer_store_dwordx4 {vr(b,4)}, v{V_L16}, s[{srd_}:{srd_+3}], s81 offen offset:{imm} {STORE_FLAGS}"]]
def act_soff(blk_code, add=0):
    c = list(blk_code) + ["s_lshl_b32 s81, s25, 2", "s_add_u32 s81, s81, s24", f"s_mul_i32 s81, s81, {NBLK}", "s_add_u32 s81, s81, s82", "s_lshl_b32 s81, s81, 10"]
    if add: c.append(f"s_add_u32 s81, s81, {add}")
    return c
def f_zsum(b, n, first):
    g = []
    for i in range(n):
        if first and i == 0: g.append([f"v_mov_b32 v{V_Z}, v{b}"])
        else: g.append([f"v_add_f32 v{V_Z}, v{V_Z}, v{b+i}"])
    return split2([[x[0] for x in g]])
def f_zwrite(tile):
    g = [[f"v_mov_b32 v{V_ZT}, v{V_Z}", "s_nop 1", f"v_permlane32_swap_b32 v{V_Z}, v{V_ZT}"],
         [f"s_lshl_b32 s80, s24, {8 if tile < 2 else 6}", f"v_add_f32 v{V_Z}, v{V_Z}, v{V_ZT}", f"v_bfe_u32 v{V_ZT}, v{V_L16}, 4, 5"],
         [f"v_lshlrev_b32 v{V_ZT}, 2, v{V_ZT}", f"v_add_u32 v{V_ZT}, s80, v{V_ZT}"],
         [f"v_add_u32 v{V_ZT}, {ZL + 128*tile if tile < 2 else KVT_P + 6720}, v{V_ZT}"] +
         (["s_mov_b64 exec, 0xffff"] if tile == 2 else []) + [f"ds_write_b32 v{V_ZT}, v{V_Z}", "@lds"] + (["s_mov_b64 exec, -1"] if tile == 2 else [])]
    return g
def f_frag(b, tile, h):
    return [[f"ds_write_b128 v{V_FW}, {vr(b,4)} offset:{(tile*2+h)*4096}", "@lds"]]

def gen_compute(a, typ):
    C = Compute(a, typ); P = C.P
    bat = {g: b for b, g in P.bpos.items() if b >= 1}
    AL0 = OPT.get("al0", 12)
    issued = [AL0]
    L, E = P.last, P.endp
    fill = []
    def add(groups, lo, hi):
        for g in groups: fill.append([lo, hi, g])
    R_ = lambda X, tau: acc_regs(typ, X, tau)
    hblk = {}
    if typ == "Q":
        pq_soff = lambda blk: ["s_lshl_b32 s81, s25, 2", "s_add_u32 s81, s81, s24", "s_lshl_b32 s81, s81, 3", "s_add_u32 s81, s81, s26", "s_mul_i32 s81, s81, 5120"] + ([f"s_add_u32 s81, s81, 4096"] if blk == 4 else [])
        b = R_(0, 2)
        add(f_phi(b, 8) + f_pack8(b) + f_gstore(b, 44, pq_soff(4), 0), E[0] + 3, E[0] + 8)
        for tau in range(2):
            b = R_(0, tau)
            gs = f_phi(b, 16)
            for h in range(2): gs += f_pack8(b + 8 * h) + f_gstore(b + 8 * h, 44, pq_soff(0), (2 * tau + h) * 1024)
            add(gs, E[0] + 9, E[1] - 2)
        GU = [(1, 2, ["s_lshl_b32 s82, s26, 3", "s_add_u32 s82, s82, 40"]), (3, 4, ["s_lshl_b32 s82, s26, 3", "s_add_u32 s82, s82, 44"])]
    else:
        b = R_(0, 2)
        gs = f_phi(b, 16, masked=True) + f_zsum(b, 16, True) + f_zwrite(2)
        for h in range(2): gs += f_pack8(b + 8 * h) + f_frag(b + 8 * h, 2, h)
        add(gs, E[0] + 3, E[0] + 8)
        for tau in range(2):
            b = R_(0, tau)
            gs = f_phi(b, 16) + f_zsum(b, 16, True) + f_zwrite(tau)
            for h in range(2): gs += f_pack8(b + 8 * h) + f_frag(b + 8 * h, tau, h)
            add(gs, E[0] + 9, E[1] - 2)
        vb = ["s_nop 7"]
        for tv in range(2):
            b = R_(1, tv)
            for h in range(2):
                for g in f_pack8(b + 8 * h) + f_frag(b + 8 * h, 3 + tv, h): vb += g
        vb += ["s_waitcnt lgkmcnt(0)", "@bar"]
        KVB = vb
        GU = [(2, 3, ["s_lshl_b32 s82, s26, 2", "s_add_u32 s82, s82, 104"])]
    boundary = {}
    if typ == 'KV': boundary[E[1]] = KVB
    def hpack(Xu, tau, blk, lo, hi):
        b = R_(Xu, tau); gs = []
        for h in range(2): gs += f_pack8(b + 8 * h) + f_gstore(b + 8 * h, 40, act_soff(blk, 0), (2 * tau + h) * 1024)
        add(gs, lo, hi)
    for Xg, Xu, blk in GU:
        add(f_sig(R_(Xg, 0)) + f_sig(R_(Xg, 1)), E[Xg] + 4, E[Xu] - 1)
        boundary[E[Xu]] = ["s_nop 7"] + [f"v_mul_f32 v{R_(Xu,tt)+i}, v{R_(Xu,tt)+i}, v{R_(Xg,tt)+i}" for tt in range(2) for i in range(16)]
        if Xu < 4:
            hpack(Xu, 0, blk, E[Xu] + 1, E[Xu + 1] - 2); hpack(Xu, 1, blk, E[Xu] + 1, E[Xu + 1] - 2)
        else: hblk['last'] = (Xu, blk)
    fill.sort(key=lambda e: e[0])
    cstamp(a, 0)
    a("s_barrier")
    C.set_addr(0)
    for i in range(PD): C.reads(i)
    seen = set()
    NI = len(P.items)
    def emit_group(g):
        for ins in g:
            if ins == "@lds": C.lq.issue(1)
            elif ins == "@bar": a("s_barrier")
            else: a(ins)
    for f in range(NI):
        X, t, tau, si = P.items[f]
        if f in bat:
            cstamp(a, bat[f])
            a("s_barrier"); C.set_addr(bat[f])
        if f + PD < NI: C.reads(f + PD)
        if X == 0 and t not in seen:
            seen.add(t)
            a(f"s_waitcnt vmcnt({issued[0] - 1 - max(seen)})")
        C.mfma(f)
        if X == 0 and issued[0] < 40 and f % 2 == 1:
            a_load(a, issued[0]); issued[0] += 1
        avail = [e for e in fill if e[0] <= f]
        budget = OPT.get("fslots", 3)
        def slots(g): return sum((2 if (x.startswith("v_exp") or x.startswith("v_rcp")) else (3 if x.startswith("ds_write_b128") else (0.5 if x.startswith("s_") else 1))) for x in g if x != "@lds")
        while avail and (budget - slots(avail[0][2]) >= 0 or urgent(fill, f)):
            e = avail.pop(0); fill.remove(e); emit_group(e[2]); budget -= slots(e[2])
        late = [e for e in fill if e[1] < f]
        assert not late, (typ, f, late[:2])
        if f in boundary:
            assert not [e for e in fill if e[1] <= f]
            a("s_nop 3"); emit_group(boundary[f])
        if typ == "Q" and f == E[1] + 8: a("s_waitcnt vmcnt(0)")
    for e in fill: emit_group(e[2])
    if 'last' in hblk:
        Xu, blk = hblk['last']
        for tau in range(2):
            b = R_(Xu, tau)
            for h in range(2):
                for g in f_pack8(b + 8 * h) + f_gstore(b + 8 * h, 40, act_soff(blk, 0), (2 * tau + h) * 1024): emit_group(g)
    else:
        a("s_nop 7"); a("s_nop 3")
        g0, u0 = R_(4, 0), R_(4, 1)
        for g in f_sig(g0): emit_group(g)
        for i in range(16): a(f"v_mul_f32 v{u0+i}, v{u0+i}, v{g0+i}")
        blk = ["s_lshl_b32 s82, s26, 1", "s_add_u32 s82, s82, 136", "s_cmp_ge_u32 s26, 6", "s_cselect_b32 s82, 0x100000, s82"]
        for h in range(2):
            for g in f_pack8(u0 + 8 * h) + f_gstore(u0 + 8 * h, 40, act_soff(blk, 0), h * 1024): emit_group(g)
    cstamp(a, 25)
    if OPT.get("cstamp"):
        for k in range(26): a(f"v_writelane_b32 v1, s{sreg_of(k)}, {k}")
        a(f"s_add_u32 s64, s22, {WS_STAMP}"); a("s_addc_u32 s65, s23, 0"); a("s_mov_b32 s66, 0x100000"); a("s_mov_b32 s67, 0x00020000")
        a("s_lshl_b32 s82, s2, 2"); a("s_add_u32 s82, s82, s24"); a("s_lshl_b32 s82, s82, 8")
        a(f"v_mbcnt_lo_u32_b32 v0, -1, 0"); a("v_mbcnt_hi_u32_b32 v0, -1, v0"); a("v_lshlrev_b32 v0, 2, v0")
        a("buffer_store_dword v1, v0, s[64:67], s82 offen")

def urgent(fill, f):
    cum = 0
    for lo, hi, g in sorted(fill, key=lambda e: e[1]):
        cum += len(g)
        if lo <= f and cum > 3 * (hi - f): return True
    return False
def sreg_of(k): return 48 + k if k < 24 else 78 + (k - 24)
def cstamp(a, k):
    if OPT.get("cstamp") and k < 26:
        a("s_memtime s[100:101]")
        a("s_waitcnt lgkmcnt(0)")
        a(f"s_mov_b32 s{sreg_of(k)}, s100")
def compute_setup(a, typ):
    srd(a, 28, 22, 23, XNP_BYTES, WS_XNP)
    L = 248
    a(f"v_and_b32 v{L}, 63, v0")
    a(f"v_lshlrev_b32 v{V_L16}, 4, v{L}")
    a("s_lshl_b32 s72, s25, 2")
    a("s_add_u32 s72, s72, s24")
    a("s_mul_i32 s72, s72, 40960")
    for t in range(OPT.get("al0", 12)): a_load(a, t)
    t1, t2, t3, t4, t5, t6 = 249, 250, 251, 252, 253, 254
    a(f"v_lshrrev_b32 v{t1}, 5, v{L}")
    a(f"v_bfe_u32 v{t2}, v{L}, 2, 2")
    a(f"v_lshlrev_b32 v{t3}, 3, v{t1}")
    a(f"v_add_u32 v{t3}, v{t3}, v{t2}")
    a(f"v_bfe_u32 v{t4}, v{L}, 4, 1")
    a(f"v_lshlrev_b32 v{t4}, 5, v{t4}")
    a(f"v_and_b32 v{t5}, 3, v{L}")
    a(f"v_lshlrev_b32 v{t5}, 3, v{t5}")
    a(f"v_add_u32 v{t4}, v{t4}, v{t5}")
    a(f"v_lshlrev_b32 v{t5}, 7, v{t3}")
    a(f"v_add_u32 v{t5}, v{t5}, v{t4}")
    a(f"v_lshrrev_b32 v{t6}, 1, v{t2}")
    a(f"v_lshlrev_b32 v{t6}, 6, v{t6}")
    a(f"v_add_u32 v{V_TR20}, v{t5}, v{t6}")
    a(f"v_mul_u32_u24 v{t5}, 192, v{t3}")
    a(f"v_add_u32 v{V_TR3}, v{t5}, v{t4}")
    srd(a, 40, 22, 23, ACT_BYTES, WS_ACT)
    srd(a, 44, 22, 23, PQ_BYTES, WS_PQ)
    a(f"s_mov_b32 s97, {fbits(-LOG2E)}"); a(f"s_mov_b32 s98, {fbits(LOG2E)}"); a(f"s_mov_b32 s99, {fbits(1e-6)}")
    a("s_mov_b32 s76, 0xffff"); a("s_mov_b32 s77, 0xffff")
    a("s_lshl_b32 s73, s24, 10")
    a(f"s_add_u32 s73, s73, {FR}")
    a(f"v_add_u32 v{V_FW}, s73, v{V_L16}")

AV_P2G, AV_P2W, AV_P2H = 8, 9, 10
AV_P3 = 11
AV_L16, AV_LANE = 14, 15
AV_RSTD, AV_C1, AV_IRS, AV_C3 = 16, 17, 18, 19
AV_DR = 20
AV_HF, AV_L31 = 23, 24
AV_DR4 = 21
AV_T = 25
ZACC = 29
AV_E = 30
SIG = 32
WD, WT = 64, 96
TD = [64, 80]
MT = 96
PQ = 128; PKF = 128; VF = 152
W2 = 176
RS = 176
OB = 176
SF = 208
CFB = 128

class Aux:
    def __init__(self, a, typ):
        self.a = a; self.typ = typ
        self.vq = Q()
        self.stage_seq = {}; self.dmaq = []; self.want = True; self.dirty = False
        self.passes = passes_for(typ)
        self.P = Plan(typ)
    def col_base(self, X, dst):
        a = self.a; name = self.passes[X][0]
        if name in ("G", "U"):
            src = 32 if name == "G" else 36
            if self.typ == "Q":
                a(f"s_lshl_b32 s{dst}, s26, 8")
                if X >= 3: a(f"s_add_u32 s{dst}, s{dst}, 128")
            else:
                a(f"s_lshl_b32 s{dst}, s26, 7"); a(f"s_add_u32 s{dst}, s{dst}, 2048")
            return src, 3456
        if name == "H":
            a(f"s_lshl_b32 s{dst}, s26, 6"); a(f"s_add_u32 s{dst}, s{dst}, 3072"); return 32, 3456
        off = {"q": 0, "k": 1280, "v": 2560}[name]
        a(f"s_mul_i32 s{dst}, s26, 160")
        if off: a(f"s_add_u32 s{dst}, s{dst}, {off}")
        return 28, 3840
    def queue_stage(self, si):
        a = self.a; st = self.P.st[si]; X = st['X']
        name, T, _ = self.passes[X]
        pitch = {"G": 3456, "U": 3456, "H": 3456}.get(name, 3840)
        rows = st['nt'] * 16; rows_w = rows // 4
        n = 4 if T == 2 else rows_w * 12 // 64
        def head():
            if st['t0'] == 0:
                src, _p = self.col_base(X, 68)
                for i in range(4): a(f"s_mov_b32 s{64+i}, s{src+i}")
            a(f"s_mul_i32 s71, s24, {rows_w*pitch}")
            a("s_add_u32 s71, s71, s68")
            a(f"s_mul_i32 s69, s24, {n*1024}")
            a(f"s_add_u32 s55, s69, {st['pos']}")
            a(f"s_add_u32 s68, s68, {rows*pitch}")
        def mk(i):
            def f():
                if i == 0: head()
                a("s_mov_b32 m0, s55")
                a("s_add_u32 s55, s55, 1024")
                if T == 2:
                    if name == "H":
                        a("s_mov_b64 exec, s[76:77]")
                        a(f"buffer_load_dwordx4 v{AV_P2H}, s[32:35], s71 offen lds")
                        a("s_mov_b64 exec, s[78:79]")
                        a(f"buffer_load_dwordx4 v{AV_P2H}, s[36:39], s71 offen lds")
                        a("s_mov_b64 exec, -1")
                        self.vq.issue(2)
                    else:
                        v = AV_P2W if name == "v" else AV_P2G
                        a(f"buffer_load_dwordx4 v{v}, s[64:67], s71 offen lds")
                        self.vq.issue(1)
                    if i < 3:
                        a(f"s_add_u32 s71, s71, {8*pitch}")
                else:
                    a(f"buffer_load_dwordx4 v{AV_P3 + i%3}, s[64:67], s71 offen lds")
                    self.vq.issue(1)
                    if i == 2 and n > 3: a(f"s_add_u32 s71, s71, {16*pitch}")
                if i == n - 1: self.stage_seq[si] = self.vq.n
            return f
        self.dmaq += [mk(i) for i in range(n)]
    def tick(self): pass
    def flush(self):
        while self.dmaq: self.dmaq.pop(0)()
    def issue_stage(self, si):
        self.queue_stage(si); self.flush()
    def wait_vm(self, seq):
        self.a(f"s_waitcnt vmcnt({min(63, self.vq.left(seq))})")

def lg0(A): A.a("s_waitcnt lgkmcnt(0)")

def aux_setup_early(a, typ):
    L = AV_LANE
    a(f"v_and_b32 v{L}, 63, v0")
    for i in range(3):
        a(f"v_add_u32 v1, {64*i}, v{L}")
        a(f"v_mul_u32_u24 v2, 171, v1")
        a(f"v_lshrrev_b32 v2, 11, v2")
        a(f"v_mul_u32_u24 v3, 12, v2")
        a(f"v_sub_u32 v3, v1, v3")
        a(f"v_lshlrev_b32 v4, 4, v3")
        if typ == "KV":
            a(f"v_add_u32 v5, 1248, v4")
            a(f"v_cmp_le_u32 vcc, 10, v3")
            a(f"v_mul_u32_u24 v6, 3840, v2")
            a("s_nop 0")
            a(f"v_cndmask_b32 v4, v4, v5, vcc")
            a(f"v_add_u32 v{AV_P3+i}, v6, v4")
        else:
            a(f"v_mul_u32_u24 v5, 3840, v2")
            a(f"v_add_u32 v{AV_P3+i}, v5, v4")
def aux_setup(a, typ):
    L = AV_LANE
    a(f"v_lshlrev_b32 v{AV_L16}, 4, v{L}")
    a(f"v_lshrrev_b32 v1, 3, v{L}")
    a(f"v_bfe_u32 v2, v{L}, 2, 1")
    a(f"v_bfe_u32 v3, v{L}, 4, 1")
    a(f"v_xor_b32 v2, v2, v3")
    a(f"v_and_b32 v3, 3, v{L}")
    a(f"v_lshlrev_b32 v3, 4, v3")
    a(f"v_lshlrev_b32 v4, 6, v2")
    a(f"v_add_u32 v4, v4, v3")
    a(f"v_mul_u32_u24 v5, 3456, v1")
    a(f"v_add_u32 v{AV_P2G}, v5, v4")
    a(f"v_add_u32 v{AV_P2H}, v5, v3")
    a(f"v_mul_u32_u24 v5, 3840, v1")
    a(f"v_add_u32 v{AV_P2W}, v5, v4")
    a(f"v_cmp_eq_u32 s[76:77], 0, v2")
    a(f"v_cmp_eq_u32 s[78:79], 1, v2")
    a(f"v_lshrrev_b32 v{AV_HF}, 5, v{L}")
    a(f"v_and_b32 v{AV_L31}, 31, v{L}")
    a("s_lshl_b32 s69, s24, 12")
    a(f"v_add_u32 v{AV_DR}, s69, v{AV_L16}")
    a(f"v_lshlrev_b32 v1, 2, v{L}")
    a(f"v_add_u32 v{AV_DR4}, s69, v1")

def get_epoch(A):
    a = A.a
    lab = a.newlabel("Lep")
    a("s_cmp_lg_u32 s2, 0"); a(f"s_cbranch_scc1 {lab}")
    a("s_cmp_lg_u32 s24, 0"); a(f"s_cbranch_scc1 {lab}")
    a("s_memrealtime s[80:81]")
    a("s_waitcnt lgkmcnt(0)")
    a("s_or_b32 s80, s80, 1")
    a(f"v_mov_b32 v{AV_T+1}, s80"); a(f"v_mov_b32 v{AV_T+2}, s81"); a(f"v_mov_b32 v{AV_T}, 0")
    a("s_mov_b64 exec, 1")
    a(f"buffer_store_dwordx2 {vr(AV_T+1,2)}, v{AV_T}, s[52:55], 0 offen sc1")
    a("s_mov_b64 exec, -1")
    a.label(lab)
def epoch_issue(A):
    a = A.a
    a(f"v_mov_b32 v{AV_T}, 0")
    a(f"buffer_load_dwordx2 {vr(AV_E,2)}, v{AV_T}, s[52:55], 0 offen sc1")
    A.ep_seq = A.vq.issue(1)
def epoch_check(A):
    a = A.a
    A.wait_vm(A.ep_seq)
    l1 = a.newlabel("Lwe"); l2 = a.newlabel("Lec")
    a(f"v_readfirstlane_b32 s81, v{AV_E}")
    a("s_cmp_lg_u32 s81, 0")
    a(f"s_cbranch_scc1 {l2}")
    a(f"v_mov_b32 v{AV_T}, 0")
    a(f"s_mov_b32 s70, {SPIN_MAX}")
    a.label(l1)
    a(f"buffer_load_dwordx2 {vr(AV_E,2)}, v{AV_T}, s[52:55], 0 offen sc1")
    a("s_waitcnt vmcnt(0)")
    a(f"v_readfirstlane_b32 s81, v{AV_E}")
    a("s_cmp_lg_u32 s81, 0")
    a(f"s_cbranch_scc1 {l2}")
    a("s_sleep 1")
    a("s_sub_u32 s70, s70, 1")
    a("s_cmp_lg_u32 s70, 0")
    a(f"s_cbranch_scc1 {l1}")
    a.label(l2)
def _tagcmp(a, tag_regs):
    a("s_mov_b64 s[82:83], exec")
    for lo in tag_regs:
        a(f"v_cmp_eq_u32 vcc, v{lo}, v{AV_E}")
        a("s_and_b64 s[82:83], s[82:83], vcc")
        a(f"v_cmp_eq_u32 vcc, v{lo+1}, v{AV_E+1}")
        a("s_and_b64 s[82:83], s[82:83], vcc")
    a("s_cmp_eq_u64 s[82:83], exec")
def tag_check(A, seq, emit_loads, tag_regs):
    a = A.a
    A.wait_vm(seq)
    done = a.newlabel("Ltc"); l1 = a.newlabel("Ltr")
    _tagcmp(a, tag_regs)
    a(f"s_cbranch_scc1 {done}")
    a(f"s_mov_b32 s70, {SPIN_MAX}")
    a.label(l1)
    a("s_sleep 1")
    emit_loads()
    a("s_waitcnt vmcnt(0)")
    _tagcmp(a, tag_regs)
    a(f"s_cbranch_scc1 {done}")
    a("s_sub_u32 s70, s70, 1")
    a("s_cmp_lg_u32 s70, 0")
    a(f"s_cbranch_scc1 {l1}")
    a.label(done)
def flg_srd(A): srd(A.a, 92, 22, 23, FLG_BYTES, WS_FLG)
def store_flag(A):
    a = A.a
    a(f"v_mov_b32 v{AV_T}, s80")
    a(f"v_mov_b32 v{AV_T+1}, 1")
    a("s_mov_b64 exec, 1")
    a(f"buffer_store_dword v{AV_T+1}, v{AV_T}, s[92:95], 0 offen sc1")
    a("s_mov_b64 exec, -1")

def task_stats_load(A):
    a = A.a
    a("s_lshl_b32 s80, s25, 7")
    a("s_lshl_b32 s81, s19, 3")
    a("s_add_u32 s80, s80, s81")
    a("s_lshl_b32 s81, s24, 1")
    a("s_add_u32 s80, s80, s81")
    a(f"v_add_u32 v{W2}, s80, v{AV_HF}")
    a(f"v_mul_u32_u24 v{W2+1}, 1280, v{W2}")
    a(f"v_lshlrev_b32 v{W2+2}, 4, v{AV_L31}")
    a(f"v_add_u32 v{W2+1}, v{W2+1}, v{W2+2}")
    a(f"v_cmp_gt_u32 vcc, 16, v{AV_L31}")
    a(f"v_mov_b32 v{W2+3}, 0x7f000000")
    a(f"v_lshlrev_b32 v{W2}, 4, v{W2}")
    a(f"v_cndmask_b32 v{W2+2}, v{W2+3}, v{W2+1}, vcc")
    a(f"buffer_load_dwordx4 {vr(W2+4,4)}, v{W2+1}, s[72:75], 0 offen")
    a(f"buffer_load_dwordx4 {vr(W2+8,4)}, v{W2+1}, s[72:75], 0 offen offset:512")
    a(f"buffer_load_dwordx4 {vr(W2+12,4)}, v{W2+2}, s[72:75], 0 offen offset:1024")
    A.st_seq = A.vq.issue(3)
def red32(a, v, t):
    for m in ("quad_perm:[1,0,3,2]", "quad_perm:[2,3,0,1]", "row_half_mirror", "row_mirror"):
        a("s_nop 1")
        a(f"v_add_f32_dpp v{v}, v{v}, v{v} {m} row_mask:0xf bank_mask:0xf")
    a(f"v_mov_b32 v{t}, v{v}")
    a("s_nop 1")
    a(f"v_permlane16_swap_b32 v{v}, v{t}")
    a("s_nop 1")
    a(f"v_add_f32 v{v}, v{v}, v{t}")
def task_stats_compute(A):
    a = A.a
    A.wait_vm(A.st_seq)
    X = W2 + 16
    for i in range(12):
        a(f"v_lshlrev_b32 v{X+2*i}, 16, v{W2+4+i}")
        a(f"v_and_b32 v{X+2*i+1}, 0xffff0000, v{W2+4+i}")
    s0, s1 = W2 + 40, W2 + 41
    a(f"v_add_f32 v{s0}, v{X}, v{X+1}")
    a(f"v_add_f32 v{s1}, v{X+2}, v{X+3}")
    for i in range(4, 24, 2):
        a(f"v_add_f32 v{s0}, v{s0}, v{X+i}")
        a(f"v_add_f32 v{s1}, v{s1}, v{X+i+1}")
    a(f"v_add_f32 v{s0}, v{s0}, v{s1}")
    A.tick()
    red32(a, s0, s1)
    a(f"v_mul_f32 v{s0}, {fbits(1/640)}, v{s0}")
    for i in range(24): a(f"v_sub_f32 v{X+i}, v{X+i}, v{s0}")
    a(f"v_cmp_gt_u32 vcc, 16, v{AV_L31}")
    q0, q1 = W2 + 42, W2 + 43
    a(f"v_mul_f32 v{q0}, v{X}, v{X}")
    a(f"v_mul_f32 v{q1}, v{X+1}, v{X+1}")
    for i in range(16, 24): a(f"v_cndmask_b32 v{X+i}, 0, v{X+i}, vcc")
    for i in range(2, 24, 2):
        a(f"v_fmac_f32 v{q0}, v{X+i}, v{X+i}")
        a(f"v_fmac_f32 v{q1}, v{X+i+1}, v{X+i+1}")
    a(f"v_add_f32 v{q0}, v{q0}, v{q1}")
    A.tick()
    red32(a, q0, q1)
    a(f"v_mul_f32 v{q0}, {fbits(1/640)}, v{q0}")
    a(f"v_add_f32 v{q0}, {fbits(1e-5)}, v{q0}")
    a(f"v_rsq_f32 v{q0}, v{q0}")
    a(f"v_mov_b32 v{q1}, v{s0}")
    a(f"v_mov_b32 v{q0+2}, v{AV_E}")
    a(f"v_mov_b32 v{q0+3}, v{AV_E+1}")
    a(f"v_cmp_eq_u32 vcc, 0, v{AV_L31}")
    a("s_nop 1")
    a("s_and_saveexec_b64 s[82:83], vcc")
    a(f"buffer_store_dwordx4 {vr(q0,4)}, v{W2}, s[84:87], 0 offen sc1")
    a("s_mov_b64 exec, s[82:83]")
    A.vq.issue(1)

def task_cs_load(A):
    a = A.a
    a("s_mul_i32 s80, s2, 0x5556")
    a("s_lshr_b32 s80, s80, 16")
    a("s_mul_i32 s81, s80, 3")
    a("s_sub_u32 s81, s2, s81")
    a("s_mov_b32 s92, s28"); a("s_mov_b32 s93, s29"); a("s_mov_b32 s94, s30"); a("s_mov_b32 s95, 0x00020000")
    a("s_mov_b32 s82, 3840")
    a("s_lshl_b32 s83, s80, 7")
    l1 = a.newlabel("Lcs")
    a("s_cmp_lt_u32 s80, 30")
    a(f"s_cbranch_scc1 {l1}")
    a("s_mov_b32 s92, s32"); a("s_mov_b32 s93, s33"); a("s_mov_b32 s94, s34")
    a("s_mov_b32 s82, 3456")
    a(f"s_sub_u32 s83, s83, {30*128}")
    a("s_cmp_lt_u32 s80, 57")
    a(f"s_cbranch_scc1 {l1}")
    a("s_mov_b32 s92, s36"); a("s_mov_b32 s93, s37"); a("s_mov_b32 s94, s38")
    a(f"s_sub_u32 s83, s83, {27*128}")
    a.label(l1)
    a("s_lshl_b32 s69, s81, 8")
    a("s_lshl_b32 s70, s24, 6")
    a("s_add_u32 s69, s69, s70")
    a(f"v_lshrrev_b32 v{W2+48}, 3, v{AV_LANE}")
    a(f"v_add_u32 v{W2+48}, s69, v{W2+48}")
    a(f"v_mul_lo_u32 v{W2+48}, v{W2+48}, s82")
    a(f"v_and_b32 v{W2+49}, 7, v{AV_LANE}")
    a(f"v_lshlrev_b32 v{W2+49}, 4, v{W2+49}")
    a(f"v_add_u32 v{W2+48}, v{W2+48}, v{W2+49}")
    a("s_lshl_b32 s70, s82, 3")
    a("s_cmp_ge_u32 s2, 252")
    a("s_cselect_b32 s83, 0x7f000000, s83")
    a("s_mul_i32 s96, s81, 5376")
    a("s_lshl_b32 s97, s80, 6")
    a("s_add_u32 s96, s96, s97")
    a("s_lshl_b32 s96, s96, 4")
    a("s_cmp_ge_u32 s2, 252")
    a("s_cselect_b32 s96, 0x7f000000, s96")
    for i in range(8):
        a(f"buffer_load_dwordx4 {vr(PQ+4*i,4)}, v{W2+48}, s[92:95], s83 offen")
        if i < 7: a("s_add_u32 s83, s83, s70")
    A.cs_seq = A.vq.issue(8)
def task_cs_compute(A):
    a = A.a
    A.wait_vm(A.cs_seq)
    acc = WD
    for i in range(8):
        for r in range(4):
            src = PQ + 4 * i + r
            d = acc if i == 0 else WT
            a(f"v_lshlrev_b32 v{d+2*r}, 16, v{src}")
            a(f"v_and_b32 v{d+2*r+1}, 0xffff0000, v{src}")
        if i:
            for e in range(8): a(f"v_add_f32 v{acc+e}, v{acc+e}, v{WT+e}")
        if i % 2: A.tick()
    a("s_nop 1")
    for e in range(8): a(f"v_add_f32_dpp v{acc+e}, v{acc+e}, v{acc+e} row_ror:8 row_mask:0xf bank_mask:0xf")
    for sw in ("v_permlane16_swap_b32", "v_permlane32_swap_b32"):
        for e in range(8): a(f"v_mov_b32 v{WT+e}, v{acc+e}")
        a("s_nop 1")
        for e in range(8): a(f"{sw} v{acc+e}, v{WT+e}")
        a("s_nop 1")
        for e in range(8): a(f"v_add_f32 v{acc+e}, v{acc+e}, v{WT+e}")
    a("s_lshl_b32 s80, s24, 8")
    a(f"v_lshlrev_b32 v{WT}, 5, v{AV_LANE}")
    a(f"v_add_u32 v{WT}, s80, v{WT}")
    a(f"v_add_u32 v{WT}, {ZL}, v{WT}")
    a("s_mov_b64 exec, 0xff")
    a(f"ds_write_b128 v{WT}, {vr(acc,4)}")
    a(f"ds_write_b128 v{WT}, {vr(acc+4,4)} offset:16")
    a("s_mov_b64 exec, -1")
    lg0(A)
def task_cs_store(A):
    a = A.a
    lab = a.newlabel("Lcss")
    a("s_cmp_lg_u32 s24, 0")
    a(f"s_cbranch_scc1 {lab}")
    a(f"v_lshlrev_b32 v{WT}, 2, v{AV_LANE}")
    a(f"v_add_u32 v{WT+1}, {ZL}, v{WT}")
    for w in range(4): a(f"ds_read_b32 v{WD+4+w}, v{WT+1} offset:{w*256}")
    lg0(A)
    a(f"v_add_f32 v{WD}, v{WD+4}, v{WD+5}")
    a(f"v_add_f32 v{WD+1}, v{WD+6}, v{WD+7}")
    a(f"v_add_f32 v{WD}, v{WD}, v{WD+1}")
    a(f"v_mov_b32 v{WD+2}, v{AV_E}")
    a(f"v_mov_b32 v{WD+3}, v{AV_E+1}")
    a(f"buffer_store_dwordx4 {vr(WD,4)}, v{AV_L16}, s[88:91], s96 offen sc1")
    a.label(lab)

def task_stats_fetch1(A):
    a = A.a
    a("s_lshl_b32 s80, s25, 7")
    a("s_lshl_b32 s81, s24, 5")
    a("s_add_u32 s80, s80, s81")
    a(f"v_add_u32 v{SF}, s80, v{AV_L31}")
    a(f"v_lshlrev_b32 v{SF}, 4, v{SF}")
    a(f"buffer_load_dwordx4 {vr(SF+4,4)}, v{SF}, s[84:87], 0 offen sc1")
    A.sf_seq = A.vq.issue(1)
def task_stats_fetch2(A):
    a = A.a; typ = A.typ
    tag_check(A, A.sf_seq, lambda: a(f"buffer_load_dwordx4 {vr(SF+4,4)}, v{SF}, s[84:87], 0 offen sc1"), [SF + 6])
    R_, M_ = SF + 4, SF + 5
    a(f"v_mov_b32 v{AV_RSTD}, v{R_}")
    a(f"v_mul_f32 v{AV_C1}, {fbits(-LOG2E)}, v{R_}")
    a(f"v_mul_f32 v{AV_C3}, {fbits(LOG2E)}, v{R_}")
    a(f"v_rcp_f32 v{AV_IRS}, v{R_}")
    t = SF + 8
    a(f"v_sub_f32 v{t}, 0, v{M_}")
    a(f"v_cvt_pk_bf16_f32 v{t+1}, v{t}, v{t}")
    a(f"v_and_b32 v{t+2}, 0xffff0000, v{t+1}")
    a(f"v_sub_f32 v{t+2}, v{t}, v{t+2}")
    a(f"v_cvt_pk_bf16_f32 v{t+2}, v{t+2}, v{t+2}")
    a(f"v_cmp_eq_u32 vcc, 0, v{AV_HF}")
    a(f"v_mov_b32 v{t+6}, 0"); a(f"v_mov_b32 v{t+7}, 0")
    a(f"v_cndmask_b32 v{t+4}, 0, v{t+1}, vcc")
    a(f"v_cndmask_b32 v{t+5}, 0, v{t+2}, vcc")
    a("s_lshl_b32 s81, s24, 10")
    a(f"s_add_u32 s81, s81, {AUGB[typ] + 4096}")
    a(f"v_add_u32 v{t}, s81, v{AV_L16}")
    a(f"ds_write_b128 v{t}, {vr(t+4,4)}")
    a("s_lshl_b32 s81, s24, 7")
    a(f"v_lshlrev_b32 v{SF}, 2, v{AV_L31}")
    a(f"v_add_u32 v{SF}, s81, v{SF}")
    a(f"v_add_u32 v{SF}, {ST_RSTD}, v{SF}")
    a(f"ds_write_b32 v{SF}, v{AV_RSTD}")
    lg0(A)
def cs_params(A, X):
    a = A.a; name = A.passes[X][0]
    j80 = lambda dst, add: (a(f"s_mul_i32 s{dst}, s26, 80"), a(f"s_add_u32 s{dst}, s{dst}, {add}"))
    if name == "q": j80(80, 0); split = 96; a("s_mov_b32 s81, s80")
    elif name == "k": j80(80, 640); split = 80; j80(81, 1280 + 64 - 80)
    elif name == "v": j80(80, 1280); split = 96; a("s_mov_b32 s81, s80")
    elif name in ("G", "U"):
        b = 1920 if name == "G" else 3648
        if A.typ == "Q":
            a("s_lshl_b32 s80, s26, 7"); a(f"s_add_u32 s80, s80, {b + (64 if X >= 3 else 0)}")
        else:
            a("s_lshl_b32 s80, s26, 6"); a(f"s_add_u32 s80, s80, {b + 1024}")
        split = 96; a("s_mov_b32 s81, s80")
    else:
        a("s_lshl_b32 s80, s26, 5"); a(f"s_add_u32 s81, s80, {3648 + 1536 - 32}"); a(f"s_add_u32 s80, s80, {1920 + 1536}")
        split = 32
    return split
def cs_addr(A, X, rnd, dst):
    a = A.a
    split = cs_params(A, X)
    c = MT
    a(f"v_add_u32 v{c}, {64*rnd}, v{AV_LANE}")
    a(f"v_mov_b32 v{c+1}, s80")
    a(f"v_mov_b32 v{c+2}, s81")
    a(f"v_cmp_gt_u32 vcc, {split}, v{c}")
    a("s_nop 1")
    a(f"v_cndmask_b32 v{c+1}, v{c+2}, v{c+1}, vcc")
    a(f"v_add_u32 v{c+1}, v{c+1}, v{c}")
    a(f"v_cmp_gt_u32 vcc, 5376, v{c+1}")
    a("s_nop 1")
    a(f"v_cndmask_b32 v{c+1}, 0, v{c+1}, vcc")
    a(f"v_lshlrev_b32 v{dst}, 4, v{c+1}")
def cs_loads(A):
    a = A.a
    for r in range(3):
        for th in range(3):
            a(f"s_mov_b32 s69, {th*5376*16}")
            a(f"buffer_load_dwordx4 {vr(CFB+12*r+4*th,4)}, v{164+r}, s[88:91], s69 offen sc1")
def task_cs_fetch1(A):
    a = A.a
    end = a.newlabel("Lcfe")
    for w in range(4):
        lab = a.newlabel("Lcf")
        if w < 3:
            a(f"s_cmp_lg_u32 s24, {w}")
            a(f"s_cbranch_scc1 {lab}")
        cs_addr(A, w, 0, 164); cs_addr(A, w, 1, 165)
        if w < 3:
            a(f"s_branch {end}")
            a.label(lab)
    a.label(end)
    cs_addr(A, 4, 0, 166)
    cs_loads(A)
    A.cf_seq = A.vq.issue(9)
def task_cs_fetch2(A):
    a = A.a; typ = A.typ
    tag_check(A, A.cf_seq, lambda: cs_loads(A), [CFB + 12 * r + 4 * th + 2 for r in range(3) for th in range(3)])
    a(f"s_mul_i32 s80, s24, {AUG_STRIDE}")
    a(f"v_lshlrev_b32 v{MT}, 1, v{AV_LANE}")
    a(f"v_add_u32 v{MT+1}, s80, v{MT}")
    a(f"v_add_u32 v{MT+1}, {AUGB[typ]}, v{MT+1}")
    a(f"v_add_u32 v{MT+2}, {AUGB[typ] + 4*AUG_STRIDE}, v{MT}")
    for r in range(3):
        b = CFB + 12 * r
        a(f"v_add_f32 v{b}, v{b}, v{b+4}")
        a(f"v_add_f32 v{b}, v{b}, v{b+8}")
        a(f"v_cvt_pk_bf16_f32 v{b+1}, v{b}, v{b}")
        a(f"v_and_b32 v{b+2}, 0xffff0000, v{b+1}")
        a(f"v_sub_f32 v{b+2}, v{b}, v{b+2}")
        a(f"v_cvt_pk_bf16_f32 v{b+2}, v{b+2}, v{b+2}")
        ad = MT + 2 if r == 2 else MT + 1
        off = 128 if r == 1 else 0
        if r == 1: a("s_mov_b64 exec, 0xffffffff")
        a(f"ds_write_b16 v{ad}, v{b+1} offset:{off}")
        a(f"ds_write_b16 v{ad}, v{b+2} offset:{off+192}")
        a(f"ds_write_b16 v{ad}, v{b+1} offset:{off+384}")
        a(f"ds_write_b16 v{ad}, v{b+2} offset:{off+576}")
        if r == 1: a("s_mov_b64 exec, -1")
    lg0(A)

def task_zero(A):
    a = A.a
    lab = a.newlabel("Lz")
    a("s_cmp_lg_u32 s25, 0")
    a(f"s_cbranch_scc1 {lab}")
    for i in range(4): a(f"v_mov_b32 v{WT+i}, 0")
    a("s_lshl_b32 s80, s24, 11")
    a(f"buffer_store_dwordx4 {vr(WT,4)}, v{AV_L16}, s[48:51], s80 offen sc1")
    a(f"buffer_store_dwordx4 {vr(WT,4)}, v{AV_L16}, s[48:51], s80 offen offset:1024 sc1")
    a("s_waitcnt vmcnt(0)")
    a("s_lshl_b32 s80, s26, 7")
    a("s_lshl_b32 s81, s24, 4")
    a("s_add_u32 s80, s80, s81")
    a("s_add_u32 s80, s80, 8192")
    store_flag(A)
    a.label(lab)

def task_w2_load(A):
    a = A.a
    a("s_lshl_b32 s80, s24, 8")
    a("s_add_u32 s80, s80, s2")
    a("s_mul_i32 s81, s80, 0x199a")
    a("s_lshr_b32 s81, s81, 16")
    a("s_mul_i32 s82, s81, 10")
    a("s_sub_u32 s82, s80, s82")
    a("s_mul_i32 s97, s81, 40")
    a("s_lshl_b32 s83, s82, 2")
    a("s_add_u32 s97, s97, s83")
    a("s_lshl_b32 s97, s97, 10")
    a("s_cmp_ge_u32 s80, 740")
    a("s_cselect_b32 s97, 0x7f000000, s97")
    a("s_mov_b32 s92, s56"); a("s_mov_b32 s93, s57"); a("s_mov_b32 s94, s58"); a("s_mov_b32 s95, 0x00020000")
    a("s_lshl_b32 s83, s81, 5")
    lab = a.newlabel("Lw2")
    a("s_cmp_lt_u32 s81, 20")
    a(f"s_cbranch_scc1 {lab}")
    a("s_mov_b32 s92, s60"); a("s_mov_b32 s93, s61"); a("s_mov_b32 s94, s62")
    a("s_sub_u32 s83, s83, 640")
    a.label(lab)
    a("s_mul_i32 s83, s83, 1280")
    a("s_lshl_b32 s82, s82, 7")
    a("s_add_u32 s83, s83, s82")
    a("s_cmp_ge_u32 s80, 740")
    a("s_cselect_b32 s83, 0x7f000000, s83")
    a(f"v_lshrrev_b32 v{WT}, 3, v{AV_LANE}")
    a(f"v_mul_u32_u24 v{WT}, 1280, v{WT}")
    a(f"v_and_b32 v{WT+1}, 7, v{AV_LANE}")
    a(f"v_lshlrev_b32 v{WT+1}, 4, v{WT+1}")
    a(f"v_add_u32 v{WT}, v{WT}, v{WT+1}")
    a("s_lshl_b32 s69, s24, 12")
    a(f"s_add_u32 m0, s69, {W2S}")
    for i in range(4):
        a(f"buffer_load_dwordx4 v{WT}, s[92:95], s83 offen lds")
        if i < 3:
            a("s_add_u32 m0, m0, 1024")
            a(f"s_add_u32 s83, s83, {8*1280}")
    A.w2_seq = A.vq.issue(4)
def task_w2_store(A):
    a = A.a
    A.wait_vm(A.w2_seq)
    a(f"v_lshrrev_b32 v{WT}, 5, v{AV_LANE}")
    a(f"v_lshlrev_b32 v{WT}, 4, v{WT}")
    a(f"v_bfe_u32 v{WT+1}, v{AV_LANE}, 4, 1")
    a(f"v_lshlrev_b32 v{WT+1}, 2, v{WT+1}")
    a(f"v_add_u32 v{WT}, v{WT}, v{WT+1}")
    a(f"v_bfe_u32 v{WT+1}, v{AV_LANE}, 2, 2")
    a(f"v_add_u32 v{WT}, v{WT}, v{WT+1}")
    a(f"v_lshlrev_b32 v{WT}, 7, v{WT}")
    a(f"v_and_b32 v{WT+1}, 3, v{AV_LANE}")
    a(f"v_lshlrev_b32 v{WT+1}, 3, v{WT+1}")
    a(f"v_add_u32 v{WT}, v{WT}, v{WT+1}")
    a("s_lshl_b32 s69, s24, 12")
    a(f"s_add_u32 s69, s69, {W2S}")
    a(f"v_add_u32 v{WT}, s69, v{WT}")
    for nt in range(4):
        a(f"ds_read_b64_tr_b16 {vr(WD+4*nt,2)}, v{WT} offset:{nt*32}")
        a(f"ds_read_b64_tr_b16 {vr(WD+4*nt+2,2)}, v{WT} offset:{nt*32+1024}")
    lg0(A)
    for nt in range(4):
        a(f"buffer_store_dwordx4 {vr(WD+4*nt,4)}, v{AV_L16}, s[44:47], s97 offen offset:{nt*1024}")
    A.vq.issue(4)

def act_base(A, blk_expr_code):
    a = A.a
    def f():
        blk_expr_code()
        a("s_lshl_b32 s81, s25, 2")
        a("s_add_u32 s81, s81, s24")
        a(f"s_mul_i32 s81, s81, {NBLK}")
        a("s_add_u32 s81, s81, s82")
        a("s_lshl_b32 s81, s81, 10")
    return f
TDB = 64
WR = 112
def call(a, sub, idx):
    if OPT.get("nosub"): return
    a(f"s_mov_b32 s70, {idx}")
    a(f"s_swappc_b64 s[62:63], s[{sub}:{sub+1}]")
SUB_SIG, SUB_H, SUB_PHI = 56, 58, 60
def gen_subs(a, name):
    a.label(f"{name}_sub_sig")
    a("s_set_gpr_idx_on s70, gpr_idx(SRC0,SRC1,DST)")
    for i in range(8): a(f"v_mul_f32 v{SIG+i}, s97, v{TDB+i}")
    for i in range(8): a(f"v_exp_f32 v{SIG+i}, v{SIG+i}")
    for i in range(8): a(f"v_add_f32 v{SIG+i}, 1.0, v{SIG+i}")
    for i in range(8): a(f"v_rcp_f32 v{SIG+i}, v{SIG+i}")
    a("s_set_gpr_idx_off")
    a("s_setpc_b64 s[62:63]")
    a.label(f"{name}_sub_h")
    a("s_set_gpr_idx_on s70, gpr_idx(SRC0,SRC1,DST)")
    for i in range(8): a(f"v_mul_f32 v{TDB+i}, v{TDB+i}, v{SIG+i}")
    a("s_set_gpr_idx_mode gpr_idx(SRC0,SRC1)")
    for i in range(4): a(f"v_cvt_pk_bf16_f32 v{MT+i}, v{TDB+2*i}, v{TDB+2*i+1}")
    a("s_set_gpr_idx_off")
    a(f"buffer_store_dwordx4 {vr(MT,4)}, v{AV_L16}, s[40:43], s81 offen {STORE_FLAGS}")
    a("s_setpc_b64 s[62:63]")
    a.label(f"{name}_sub_phi")
    a("s_set_gpr_idx_on s70, gpr_idx(SRC1)")
    for i in range(8): a(f"v_mul_f32 v{MT+i}, s98, v{TDB+i}")
    a("s_set_gpr_idx_off")
    for i in range(8): a(f"v_exp_f32_e64 v{MT+i}, v{MT+i} clamp")
    for i in range(8): a(f"v_add_f32 v{MT+i}, s99, v{MT+i}")
    a("s_set_gpr_idx_on s70, gpr_idx(SRC1)")
    for i in range(8): a(f"v_add_f32 v{WR+i}, v{MT+i}, v{TDB+i}")
    a("s_set_gpr_idx_off")
    for i in range(8): a(f"v_max_f32 v{WR+i}, v{WR+i}, v{MT+i}")
    a("s_setpc_b64 s[62:63]")
def gen_sub_cphi(a, name):
    T, R, Pk = 192, 200, 208
    a.label(f"{name}_sub_cphi")
    a("s_set_gpr_idx_on s70, gpr_idx(SRC1)")
    for i in range(8): a(f"v_mul_f32 v{T+i}, s98, v{SA+i}")
    a("s_set_gpr_idx_off")
    for i in range(8): a(f"v_exp_f32_e64 v{T+i}, v{T+i} clamp")
    for i in range(8): a(f"v_add_f32 v{T+i}, s99, v{T+i}")
    a("s_set_gpr_idx_on s70, gpr_idx(SRC1)")
    for i in range(8): a(f"v_add_f32 v{R+i}, v{T+i}, v{SA+i}")
    a("s_set_gpr_idx_off")
    for i in range(8): a(f"v_max_f32 v{R+i}, v{R+i}, v{T+i}")
    a("s_set_gpr_idx_on s70, gpr_idx(SRC0)")
    for i in range(8): a(f"v_cndmask_b32 v{R+i}, v{SA+i}, v{R+i}, s[72:73]")
    a("s_set_gpr_idx_off")
    for i in range(4): a(f"v_cvt_pk_bf16_f32 v{Pk+i}, v{R+2*i}, v{R+2*i+1}")
    a(f"v_add_u32 v214, s74, v{V_DW}")
    a(f"v_add_f32 v{T}, v{R}, v{R+1}"); a(f"v_add_f32 v{T+1}, v{R+2}, v{R+3}")
    a(f"v_add_f32 v{T+2}, v{R+4}, v{R+5}"); a(f"v_add_f32 v{T+3}, v{R+6}, v{R+7}")
    a(f"ds_write_b128 v214, {vr(Pk,4)}")
    a(f"v_add_f32 v{T}, v{T}, v{T+1}"); a(f"v_add_f32 v{T+2}, v{T+2}, v{T+3}")
    a(f"v_add_f32 v212, v{T}, v{T+2}")
    a("s_setpc_b64 s[62:63]")
def subs_addr(a, name):
    a("s_getpc_b64 s[62:63]")
    lab = a.newlabel("Lpc"); a.label(lab)
    for sub, nm in ((SUB_SIG, "sig"), (SUB_H, "h"), (SUB_PHI, "phi")):
        a(f"s_add_u32 s{sub}, s62, {name}_sub_{nm}-{lab}")
        a(f"s_addc_u32 s{sub+1}, s63, 0")

def need(A):
    if A.want: lg0(A); A.dirty = False
def mo_read(A, buf, tau, nq=4, wide=False):
    a = A.a; d = TDB + 16 * tau
    A.dirty = True
    if OPT.get("nord"): return
    if wide:
        a(f"v_add_u32 v{AV_T}, {buf}, v{AV_DR}")
        for q in range(nq): a(f"ds_read_b128 {vr(d+4*q,4)}, v{AV_T} offset:{q*1024}")
        return
    a(f"v_add_u32 v{AV_T}, {buf}, v{AV_DR4}")
    for r in range(4 * nq): a(f"ds_read_b32 v{d+r}, v{AV_T} offset:{r*256}")
def mo_sig(A, hh):
    need(A); call(A.a, SUB_SIG, 8 * hh)
def mo_h(A, hh, sigidx_same, blk_code, blk):
    a = A.a; need(A)
    blk_code()
    if blk * 1024: a(f"s_add_u32 s81, s81, {blk*1024}")
    call(a, SUB_H, 8 * hh)
    A.vq.issue(1)
def mo_phi(A, hh, dst):
    a = A.a; need(A)
    call(a, SUB_PHI, 8 * hh)
    for i in range(4): a(f"v_cvt_pk_bf16_f32 v{dst+i}, v{WR+2*i}, v{WR+2*i+1}")
def mo_kv(A, hh, h, kind, dstf, tau):
    a = A.a; lg0(A)
    b = TDB + 8 * hh
    if kind == "v":
        for i in range(4): a(f"v_cvt_pk_bf16_f32 v{dstf+4*h+i}, v{b+2*i}, v{b+2*i+1}")
        return
    call(a, SUB_PHI, 8 * hh)
    if kind == "kv":
        a(f"v_cmp_gt_u32 vcc, 16, v{AV_L31}")
        a("s_nop 1")
        for k in range(8): a(f"v_cndmask_b32 v{WR+k}, v{b+k}, v{WR+k}, vcc")
    for i in range(4): a(f"v_cvt_pk_bf16_f32 v{dstf+4*h+i}, v{WR+2*i}, v{WR+2*i+1}")
    w = WR
    a(f"v_add_f32 v{MT}, v{w}, v{w+1}"); a(f"v_add_f32 v{MT+1}, v{w+2}, v{w+3}")
    a(f"v_add_f32 v{MT+2}, v{w+4}, v{w+5}"); a(f"v_add_f32 v{MT+3}, v{w+6}, v{w+7}")
    a(f"v_add_f32 v{MT}, v{MT}, v{MT+1}"); a(f"v_add_f32 v{MT+2}, v{MT+2}, v{MT+3}")
    if h == 0: a(f"v_add_f32 v{ZACC}, v{MT}, v{MT+2}")
    else:
        a(f"v_add_f32 v{MT}, v{MT}, v{MT+2}")
        a(f"v_add_f32 v{MT}, v{MT}, v{ZACC}")
        a(f"v_mov_b32 v{MT+1}, v{MT}")
        a("s_nop 1")
        a(f"v_permlane32_swap_b32 v{MT}, v{MT+1}")
        a(f"s_lshl_b32 s80, s24, {8 if tau < 2 else 6}")
        a(f"v_lshlrev_b32 v{AV_T}, 2, v{AV_L31}")
        a(f"v_add_f32 v{MT}, v{MT}, v{MT+1}")
        a(f"v_add_u32 v{AV_T}, s80, v{AV_T}")
        a(f"v_add_u32 v{AV_T}, {ZL + 128*tau if tau < 2 else KVT_P + 6720}, v{AV_T}")
        if tau == 2: a("s_mov_b64 exec, 0xffff")
        a(f"ds_write_b32 v{AV_T}, v{MT}")
        if tau == 2: a("s_mov_b64 exec, -1")

def kv_zflag1(A):
    a = A.a
    a("s_lshl_b32 s80, s26, 7"); a("s_add_u32 s80, s80, 8192")
    a(f"v_add_u32 v6, s80, v{AV_L16}")
    a("s_mov_b64 exec, 15")
    a(f"buffer_load_dwordx2 v[4:5], v6, s[92:95], 0 offen sc1")
    a("s_mov_b64 exec, -1")
    A.zf_seq = A.vq.issue(1)
def kv_write_frags(A):
    a = A.a
    a("s_lshl_b32 s80, s24, 10")
    a(f"v_add_u32 v{AV_T}, s80, v{AV_L16}")
    a(f"v_add_u32 v{AV_T+1}, {FRB}, v{AV_T}")
    for tile in range(5):
        for blk in range(2):
            src = (PKF + 8 * tile if tile < 3 else VF + 8 * (tile - 3)) + 4 * blk
            idx = (tile * 2 + blk) * 4
            if idx < 16: a(f"ds_write_b128 v{AV_T}, {vr(src,4)} offset:{FRA + idx*1024}")
            else: a(f"ds_write_b128 v{AV_T+1}, {vr(src,4)} offset:{(idx-16)*1024}")
    lg0(A)
PRODS = [[(0, 3), (1, 2)], [(0, 4), (2, 4)], [(1, 3), (2, 2)], [(1, 4)]]
def kv_addr(A):
    a = A.a
    for w in range(4):
        lab = a.newlabel("Lka")
        a(f"s_cmp_lg_u32 s24, {w}")
        a(f"s_cbranch_scc1 {lab}")
        for pi, (dt, et) in enumerate(PRODS[w]):
            eg, he, dd, ad, tm = [192 + 8 * pi + i for i in range(5)]
            add = {3: 0, 4: 32, 2: 48}[et]
            a(f"v_add_u32 v{eg}, {add}, v{AV_L31}")
            a(f"v_mul_u32_u24 v{he}, 205, v{eg}")
            a(f"v_lshrrev_b32 v{he}, 12, v{he}")
            a(f"v_mul_u32_u24 v{tm}, 20, v{he}")
            a(f"v_lshlrev_b32 v{dd}, 2, v{AV_HF}")
            a(f"v_add_u32 v{dd}, {32*dt}, v{dd}")
            a(f"v_sub_u32 v{dd}, v{dd}, v{tm}")
            a(f"v_mul_u32_u24 v{ad}, 80, v{eg}")
            a(f"v_lshlrev_b32 v{tm}, 2, v{dd}")
            a(f"v_add_u32 v{ad}, v{ad}, v{tm}")
            a(f"v_add_u32 v{ad}, {KVT_P}, v{ad}")
            if et == 2:
                a(f"v_cmp_gt_u32 vcc, 16, v{AV_L31}")
                a(f"v_mov_b32 v{tm}, 0x1000")
                a("s_nop 0")
                a(f"v_cndmask_b32 v{dd}, v{dd}, v{tm}, vcc")
            for q in range(4 if dt < 2 else 2):
                a(f"v_add_u32 v{tm}, {8*q}, v{dd}")
                a(f"v_cmp_gt_u32 s[{4+8*pi+2*q}:{5+8*pi+2*q}], 20, v{tm}")
        a.label(lab)
    a(f"v_add_u32 v{AV_T}, {FR}, v{AV_L16}")
def kv_prod_scatter(A):
    a = A.a
    for w in range(4):
        lab = a.newlabel("Lkp")
        a(f"s_cmp_lg_u32 s24, {w}")
        a(f"s_cbranch_scc1 {lab}")
        prods = PRODS[w]
        steps = [(sw, blk) for sw in range(4) for blk in range(2)]
        for pi, (dt, et) in enumerate(prods):
            for k, (sw, blk) in enumerate(steps):
                for idx, dst in (((dt * 2 + blk) * 4 + sw, 64 + 64 * pi + 8 * k), ((et * 2 + blk) * 4 + sw, 68 + 64 * pi + 8 * k)):
                    a(f"ds_read_b128 {vr(dst,4)}, v{AV_T} offset:{idx*1024}")
            if pi == 0 and len(prods) > 1: pass
        tot = 16 * len(prods)
        for pi, (dt, et) in enumerate(prods):
            Dr = 208 + 16 * pi
            for k in range(8):
                left = tot - (16 * pi + 2 * k + 2)
                a(f"s_waitcnt lgkmcnt({min(left, 15)})")
                c = "0" if k == 0 else vr(Dr, 16)
                a(f"v_mfma_f32_32x32x16_bf16 {vr(Dr,16)}, {vr(64+64*pi+8*k,4)}, {vr(68+64*pi+8*k,4)}, {c}")
        if w == 3:
            a(f"v_lshlrev_b32 v184, 2, v{AV_LANE}")
            a(f"v_add_u32 v185, {ZL}, v184")
            a(f"v_add_u32 v186, {KVT_P + 6720}, v184")
            for ww in range(4): a(f"ds_read_b32 v{187+ww}, v185 offset:{ww*256}")
            for ww in range(4): a(f"ds_read_b32 v{176+ww}, v186 offset:{ww*64}")
            lg0(A)
            a(f"v_add_f32 v187, v187, v188"); a(f"v_add_f32 v189, v189, v190"); a(f"v_add_f32 v187, v187, v189")
            a(f"v_add_f32 v176, v176, v177"); a(f"v_add_f32 v178, v178, v179"); a(f"v_add_f32 v176, v176, v178")
            a(f"v_add_u32 v185, {KVT_P + 6400}, v184")
            a(f"ds_write_b32 v185, v187")
            a("s_mov_b64 exec, 0xffff")
            a(f"ds_write_b32 v185, v176 offset:256")
            a("s_mov_b64 exec, -1")
        a("s_nop 7"); a("s_nop 7")
        for pi, (dt, et) in enumerate(prods):
            Dr = 208 + 16 * pi
            ad = 192 + 8 * pi + 3
            for q in range(4 if dt < 2 else 2):
                a(f"s_mov_b64 exec, s[{4+8*pi+2*q}:{5+8*pi+2*q}]")
                a(f"ds_write_b128 v{ad}, {vr(Dr+4*q,4)} offset:{32*q}")
            a("s_mov_b64 exec, -1")
        a.label(lab)
    lg0(A)
def kv_atomics(A):
    a = A.a
    a("s_lshl_b32 s80, s24, 8")
    a(f"v_lshlrev_b32 v{AV_T}, 2, v{AV_LANE}")
    a(f"v_add_u32 v{AV_T}, s80, v{AV_T}")
    a(f"v_add_u32 v{AV_T+1}, {KVT_P}, v{AV_T}")
    for m in range(7): a(f"ds_read_b32 v{128+m}, v{AV_T+1} offset:{m*1024}")
    lg0(A)
    a("s_and_b32 s80, s25, 3")
    a("s_lshl_b32 s80, s80, 13")
    for m in range(7):
        a(f"buffer_atomic_add_f32 v{128+m}, v{AV_T}, s[48:51], s80 offen")
        if m < 6: a("s_add_u32 s80, s80, 1024")
    A.kv_at = A.vq.issue(7)

def o_poll(A):
    a = A.a
    done = a.newlabel("Lfd"); l1 = a.newlabel("Lfr")
    a("s_cmp_lg_u32 s24, 0")
    a(f"s_cbranch_scc1 {done}")
    a("s_lshl_b32 s80, s26, 11")
    a(f"v_lshlrev_b32 v{OB}, 7, v{AV_LANE}")
    a(f"v_add_u32 v{OB}, s80, v{OB}")
    a("s_mov_b64 exec, 0xffff")
    a(f"s_mov_b32 s70, {SPIN_MAX}")
    a.label(l1)
    a(f"buffer_load_dword v{OB+2}, v{OB}, s[92:95], 0 offen sc1")
    a("s_waitcnt vmcnt(0)")
    a(f"v_cmp_ne_u32 vcc, 0, v{OB+2}")
    a("s_cmp_eq_u64 vcc, exec")
    l2 = a.newlabel("Lfe")
    a(f"s_cbranch_scc1 {l2}")
    a("s_sleep 1")
    a("s_sub_u32 s70, s70, 1")
    a("s_cmp_lg_u32 s70, 0")
    a(f"s_cbranch_scc1 {l1}")
    a.label(l2)
    a("s_mov_b64 exec, -1")
    a.label(done)
def o_fetch1(A):
    a = A.a
    a("s_mul_i32 s80, s24, 1792")
    a(f"v_add_u32 v{OB}, s80, v{AV_L16}")
    for r in range(4):
        a(f"s_mov_b32 s81, {r*8192}")
        a(f"buffer_load_dwordx4 {vr(OB+4+8*r,4)}, v{OB}, s[48:51], s81 offen sc1")
        a(f"buffer_load_dwordx4 {vr(OB+8+8*r,4)}, v{OB}, s[48:51], s81 offen offset:1024 sc1")
    A.of2_seq = A.vq.issue(8)
def o_fetch2(A):
    a = A.a
    A.wait_vm(A.of2_seq)
    for e in range(8):
        a(f"v_add_f32 v{OB+4+e}, v{OB+4+e}, v{OB+12+e}")
        a(f"v_add_f32 v{OB+20+e}, v{OB+20+e}, v{OB+28+e}")
    for e in range(8): a(f"v_add_f32 v{OB+4+e}, v{OB+4+e}, v{OB+20+e}")
    a(f"v_add_u32 v{OB}, {KVC}, v{OB}")
    a(f"ds_write_b128 v{OB}, {vr(OB+4,4)}")
    a(f"s_mov_b32 s80, -1"); a("s_mov_b32 s81, 0xffff")
    a("s_mov_b64 exec, s[80:81]")
    a(f"ds_write_b128 v{OB}, {vr(OB+8,4)} offset:1024")
    a("s_mov_b64 exec, -1")
    lg0(A)
OFR4 = [(0, 0), (0, 1), (0, 2), (1, 1), (1, 2), (1, 3), (1, 4), (2, 0), (2, 1), (2, 2), (2, 3), (2, 4)]
def o_build4(A, rnd):
    a = A.a
    end = a.newlabel("Lobe")
    eg, he, dd, ad, tm, t2 = [OB + 16 + k for k in range(6)]
    V, PK = OB, OB + 8
    for w in range(4):
        i = 4 * rnd + w
        et, db = OFR4[i]
        lab = a.newlabel("Lob")
        if w < 3:
            a(f"s_cmp_lg_u32 s24, {w}")
            a(f"s_cbranch_scc1 {lab}")
        a(f"s_mov_b32 s80, {32*et}"); a(f"s_mov_b32 s81, {16*db}"); a(f"s_mov_b32 s82, {KVF + i*1024}")
        a(f"s_mov_b32 s83, {32 if et < 2 else 20}")
        if w < 3:
            a(f"s_branch {end}")
            a.label(lab)
    a.label(end)
    a(f"v_add_u32 v{eg}, s80, v{AV_L31}")
    a(f"v_mul_u32_u24 v{he}, 205, v{eg}")
    a(f"v_lshrrev_b32 v{he}, 12, v{he}")
    a(f"v_subrev_u32 v{tm}, 80, v{eg}")
    a(f"v_cmp_le_u32 vcc, 80, v{eg}")
    a(f"v_lshlrev_b32 v{dd}, 2, v{AV_HF}")
    a(f"v_add_u32 v{dd}, s81, v{dd}")
    a(f"v_cndmask_b32 v{he}, v{he}, v{tm}, vcc")
    a(f"v_mul_u32_u24 v{tm}, 20, v{he}")
    a(f"v_sub_u32 v{dd}, v{dd}, v{tm}")
    a(f"v_cmp_gt_u32 vcc, s83, v{AV_L31}")
    a(f"v_mov_b32 v{tm}, 0x1000")
    a(f"v_mul_u32_u24 v{ad}, 80, v{eg}")
    a(f"v_cndmask_b32 v{dd}, v{tm}, v{dd}, vcc")
    a(f"v_add_u32 v{t2}, 8, v{dd}")
    a(f"v_cmp_gt_u32 s[72:73], 20, v{dd}")
    a(f"v_cmp_gt_u32 s[74:75], 20, v{t2}")
    a(f"v_add_u32 v{ad}, {KVC}, v{ad}")
    a("s_nop 0")
    a(f"v_cndmask_b32 v{dd}, 0, v{dd}, s[72:73]")
    a(f"v_cndmask_b32 v{t2}, 0, v{t2}, s[74:75]")
    a(f"v_lshl_add_u32 v{dd}, v{dd}, 2, v{ad}")
    a(f"v_lshl_add_u32 v{t2}, v{t2}, 2, v{ad}")
    a(f"ds_read_b128 {vr(V,4)}, v{dd}")
    a(f"ds_read_b128 {vr(V+4,4)}, v{t2}")
    a(f"v_add_u32 v{tm}, s82, v{AV_L16}")
    lg0(A)
    for p in range(4): a(f"v_cvt_pk_bf16_f32 v{PK+p}, v{V+2*p}, v{V+2*p+1}")
    for p in range(2): a(f"v_cndmask_b32 v{PK+p}, 0, v{PK+p}, s[72:73]")
    for p in range(2): a(f"v_cndmask_b32 v{PK+2+p}, 0, v{PK+2+p}, s[74:75]")
    a(f"ds_write_b128 v{tm}, {vr(PK,4)}")
RD = 248
def o_mfma(A, et):
    a = A.a
    N, FRG = OB, OB + 32
    idxs = [i for i, (e, db) in enumerate(OFR4) if e == et]
    a(f"v_add_u32 v{AV_T}, {KVF}, v{AV_L16}")
    for k, i in enumerate(idxs): a(f"ds_read_b128 {vr(FRG+4*k,4)}, v{AV_T} offset:{i*1024}")
    A.tick()
    for k, i in enumerate(idxs):
        a(f"s_waitcnt lgkmcnt({len(idxs)-1-k})")
        c = "0" if k == 0 else vr(N, 16)
        a(f"v_mfma_f32_32x32x16_bf16 {vr(N,16)}, {vr(FRG+4*k,4)}, {vr(PQ+4*OFR4[i][1],4)}, {c}")
    A.tick()
    a("s_nop 7"); a("s_nop 7")
def o_rd(et, q):
    e0 = 32 * et + 8 * q
    if e0 == 16: return RD + 4
    if e0 == 56: return RD + 5
    return RD + e0 // 20
def o_scale_store(A, et):
    a = A.a
    N = OB; PKD = OB + 24
    nq = 4 if et < 2 else 2
    for q in range(nq):
        for e in range(4): a(f"v_mul_f32 v{N+4*q+e}, v{N+4*q+e}, v{o_rd(et, q)}")
    for i in range(2 * nq): a(f"v_cvt_pk_bf16_f32 v{PKD+i}, v{N+2*i}, v{N+2*i+1}")
    act_base(A, lambda: a("s_mul_i32 s82, s26, 5"))()
    if et == 2: a("s_add_u32 s81, s81, 4096")
    a(f"buffer_store_dwordx4 {vr(PKD,4)}, v{AV_L16}, s[40:43], s81 offen offset:{(2*et*1024) % 4096} {STORE_FLAGS}")
    A.vq.issue(1)
    if et < 2:
        a(f"buffer_store_dwordx4 {vr(PKD+4,4)}, v{AV_L16}, s[40:43], s81 offen offset:{(2*et+1)*1024} {STORE_FLAGS}")
        A.vq.issue(1)
    a("s_nop 1")
def o_comp_den(A):
    a = A.a
    o_mfma(A, 2)
    N = OB
    for h in range(4): a(f"v_mov_b32 v{RD+h}, v{N+8+h}")
    for h in range(4): a(f"v_mov_b32 v{OB+16+h}, v{N+8+h}")
    a("s_nop 1")
    for h in range(4): a(f"v_permlane32_swap_b32 v{RD+h}, v{OB+16+h}")
    a("s_nop 1")
    for h in range(4): a(f"v_add_f32 v{RD+h}, s99, v{RD+h}")
    for h in range(4): a(f"v_rcp_f32 v{RD+h}, v{RD+h}")
    a(f"v_cmp_eq_u32 vcc, 1, v{AV_HF}")
    a("s_nop 1")
    a(f"v_cndmask_b32 v{RD+4}, v{RD}, v{RD+1}, vcc")
    a(f"v_cndmask_b32 v{RD+5}, v{RD+2}, v{RD+3}, vcc")
    o_scale_store(A, 2)
def o_comp(A, et):
    o_mfma(A, et); o_scale_store(A, et)

COST = dict(valu=6, trans=11, ds=10, dsw=40, vm=35, salu=3)
def instr_cost(line):
    s = line.strip()
    if not s or s.endswith(":") or s.startswith(";"): return 0
    op = s.split()[0]
    if op.startswith("v_mfma"): return 25
    if op.startswith("v_exp") or op.startswith("v_rcp") or op.startswith("v_rsq"): return COST['trans']
    if op.startswith("v_"): return COST['valu']
    if op.startswith("ds_write") or op.startswith("ds_add"): return COST['dsw']
    if op.startswith("ds_"): return COST['ds']
    if op.startswith("buffer_"): return COST['vm']
    if op == "s_swappc_b64":
        return {"56": 290, "58": 130, "60": 300}[s.split("s[")[2].split(":")[0]]
    if op == "s_waitcnt": return 60 if "lgkmcnt(0)" in s else 10
    if op == "s_nop": return 4 * (int(s.split()[1]) + 1)
    return COST['salu']
def seg_stamp(a, k):
    if OPT.get("segstamp") and k < 64:
        a("s_memtime s[100:101]")
        a("s_waitcnt lgkmcnt(0)")
        a(f"v_writelane_b32 v7, s100, {k}")
class Prog:
    def __init__(self, A, cap, lead):
        self.A = A; self.a = A.a; self.P = A.P; self.NS = A.P.ns
        self.k = 0; self.mark = len(self.a.L); self.used = 0
        self.cap = cap; self.lead = lead; self.nxt = 0
        self.log = {}; self.pend_rd = []; self.hold = False; self.kend = 0
        A.tick = self.tick
    def elapsed(self):
        for l in self.a.L[self.mark:]: self.used += instr_cost(l)
        self.mark = len(self.a.L)
        return self.used
    def queue(self):
        k = self.k
        while self.nxt <= min(k + self.lead(k), self.NS - 1) and self.P.st[self.nxt]['earliest'] <= k:
            self.A.queue_stage(self.nxt); self.nxt += 1
    def close(self):
        A = self.A; k = self.k
        A.flush()
        if k < self.NS: A.wait_vm(A.stage_seq[k])
        if k < 31: seg_stamp(self.a, k)
        self.a("s_barrier")
        if k < 31: seg_stamp(self.a, 32 + k)
        self.log.setdefault(k, []).append(f"[{self.elapsed()}]")
        self.k += 1; self.used = 0; self.mark = len(self.a.L)
        self.queue()
        self.try_reads()
    def try_reads(self):
        while self.pend_rd and self.pend_rd[0][0] <= self.k:
            lo, hi, name, fn = self.pend_rd.pop(0)
            assert self.k <= hi, (name, self.k, lo, hi)
            self.log.setdefault(self.k, []).append(name)
            fn()
    def tick(self):
        self.try_reads()
        if self.A.dmaq: self.A.dmaq.pop(0)()
        if self.k < self.NS and self.elapsed() >= self.cap(self.k) and not self.hold: self.close()
    def run(self, name, fn, lo=0, hi=99):
        while self.k < lo: self.close()
        assert self.k <= hi, (name, self.k, lo, hi)
        self.log.setdefault(self.k, []).append(name)
        fn()
        self.kend = self.k
        kend = self.k
        self.tick()
        return kend

def pq_load(A):
    a = A.a
    a("s_lshl_b32 s81, s25, 2"); a("s_add_u32 s81, s81, s24"); a("s_lshl_b32 s81, s81, 3"); a("s_add_u32 s81, s81, s26"); a("s_mul_i32 s81, s81, 5120")
    for b in range(4): a(f"buffer_load_dwordx4 {vr(PQ+4*b,4)}, v{AV_L16}, s[44:47], s81 offen offset:{b*1024}")
    a("s_add_u32 s81, s81, 4096")
    a(f"buffer_load_dwordx4 {vr(PQ+16,4)}, v{AV_L16}, s[44:47], s81 offen")
    A.pq_seq = A.vq.issue(5)

def gen_aux(a, typ):
    A = Aux(a, typ); P = A.P; NS = P.ns
    if OPT.get("segstamp"): a("v_writelane_b32 v7, s100, 63")
    cap = lambda k: OPT.get('capx', 450)
    LEAD0 = OPT.get("lead0", 2)
    R = Prog(A, cap, lambda k: LEAD0 if k < 5 else OPT.get("lead1", 4))
    for s_ in range(2): A.issue_stage(s_)
    R.nxt = 2
    srd(a, 32, 12, 13, D * F * 2)
    srd(a, 36, 14, 15, D * F * 2)
    srd(a, 40, 22, 23, ACT_BYTES, WS_ACT)
    srd(a, 44, 22, 23, PQ_BYTES, WS_PQ)
    a("s_lshl_b32 s69, s26, 15")
    a(f"s_add_u32 s69, s69, {WS_KV}")
    a("s_add_u32 s48, s22, s69"); a("s_addc_u32 s49, s23, 0"); a(f"s_mov_b32 s50, {KV_STRIDE*KV_REP}"); a("s_mov_b32 s51, 0x00020000")
    aux_setup(a, typ)
    flg_srd(A)
    a(f"s_mov_b32 s99, {fbits(1e-6)}")
    R.close()
    run = R.run
    if typ == "Q":
        O0 = OPT.get("o0", 18)
        run("pql", lambda: pq_load(A), lo=P.seg_after(P.endp[1] + 8))
        kk = run("opl", lambda: o_poll(A), lo=O0)
        kk = run("of1", lambda: o_fetch1(A), lo=kk + 1)
        kk = run("of2", lambda: o_fetch2(A), lo=kk + 1)
        for r in range(3): kk = run(f"ob{r}", lambda: o_build4(A, r), lo=kk + (1 if r == 0 else 0))
        lg0(A)
        run("ocd", lambda: (A.wait_vm(A.pq_seq), o_comp_den(A)), lo=kk + 1)
        run("oc0", lambda: o_comp(A, 0))
        run("oc1", lambda: o_comp(A, 1))
    else:
        while R.k <= 10: R.close()
        R.hold = True
        run("kvadr", lambda: kv_addr(A))
        R.hold = False
        a("s_barrier")
        kk = run("kvp", lambda: kv_prod_scatter(A))
        kk = run("kva", lambda: kv_atomics(A), lo=kk + 1)
        kk = run("kvw8", lambda: A.wait_vm(A.kv_at), lo=kk + OPT.get("kvdgap", 1))
        def kvd():
            lab = a.newlabel("Lkd")
            a("s_cmp_lg_u32 s24, 0"); a(f"s_cbranch_scc1 {lab}")
            a("s_lshl_b32 s80, s26, 11"); a("s_lshl_b32 s81, s25, 7"); a("s_add_u32 s80, s80, s81")
            store_flag(A)
            a.label(lab)
        run("kvd", kvd, lo=kk + 1)
    while R.k < NS: R.close()
    if OPT.get("verbose"):
        for k in sorted(R.log): print(typ, k, R.log[k])
    if OPT.get("segstamp"):
        a(f"s_add_u32 s64, s22, {WS_STAMP}"); a("s_addc_u32 s65, s23, 0"); a("s_mov_b32 s66, 0x100000"); a("s_mov_b32 s67, 0x00020000")
        a("s_lshl_b32 s82, s2, 2"); a("s_add_u32 s82, s82, s24"); a("s_lshl_b32 s82, s82, 8")
        a(f"v_lshlrev_b32 v6, 2, v{AV_LANE}")
        a("buffer_store_dword v7, v6, s[64:67], s82 offen")

NAME = ['front_kernel']
def gen_front(name="front_kernel", stamp=0, mapv=None):
    mapv = OPT.get("mapv", 0) if mapv is None else mapv
    NAME[0] = name
    a = Asm(); a.L.append(head(name))
    if stamp: a("s_memrealtime s[100:101]")
    if OPT.get("segstamp"): a("s_memtime s[100:101]")
    a("s_cmp_ge_u32 s2, 256")
    a(f"s_cbranch_scc1 {name}_end")
    a("s_load_dwordx4 s[4:7], s[0:1], 0")
    a("s_load_dwordx2 s[8:9], s[0:1], 16")
    a("s_load_dwordx4 s[12:15], s[0:1], 32")
    a("s_load_dwordx2 s[16:17], s[0:1], 48")
    a("s_load_dwordx4 s[20:23], s[0:1], 64")
    a("v_lshrrev_b32 v1, 6, v0")
    a("s_and_b32 s83, s2, 7")
    a("v_readfirstlane_b32 s3, v1")
    a("s_lshr_b32 s84, s2, 3")
    if mapv == 0:
        a("s_and_b32 s25, s83, 1"); a("s_lshl_b32 s25, s25, 3"); a("s_and_b32 s85, s84, 7"); a("s_add_u32 s25, s25, s85")
        a("s_lshr_b32 s85, s83, 1"); a("s_lshr_b32 s86, s84, 3")
        a("s_lshr_b32 s27, s86, 1")
        a("s_lshl_b32 s26, s85, 1"); a("s_and_b32 s86, s86, 1"); a("s_add_u32 s26, s26, s86")
    else:
        a("s_and_b32 s25, s83, 3"); a("s_lshl_b32 s25, s25, 2"); a("s_and_b32 s85, s84, 3"); a("s_add_u32 s25, s25, s85")
        a("s_lshr_b32 s85, s83, 2"); a("s_lshr_b32 s86, s84, 2")
        a("s_lshr_b32 s27, s86, 2")
        a("s_lshl_b32 s26, s85, 2"); a("s_and_b32 s86, s86, 3"); a("s_add_u32 s26, s26, s86")
    a("s_lshl_b32 s19, s27, 3")
    a("s_add_u32 s19, s19, s26")
    a("s_and_b32 s24, s3, 3")
    a("s_cmp_ge_u32 s3, 4")
    a(f"s_cbranch_scc1 {name}_aux")
    def fin_stamp():
        if stamp:
            a("s_waitcnt vmcnt(0) lgkmcnt(0)")
            a("s_memrealtime s[80:81]")
            a("s_waitcnt lgkmcnt(0)")
            a(f"s_add_u32 s64, s22, {WS_STAMP}"); a("s_addc_u32 s65, s23, 0"); a("s_mov_b32 s66, 65536"); a("s_mov_b32 s67, 0x00020000")
            a("s_lshl_b32 s82, s2, 3"); a("s_add_u32 s82, s82, s3"); a("s_lshl_b32 s82, s82, 4")
            a("v_mov_b32 v0, s100"); a("v_mov_b32 v1, s101"); a("v_mov_b32 v2, s80"); a("v_mov_b32 v3, s81"); a("v_mov_b32 v4, s82")
            a("s_mov_b64 exec, 1")
            a("buffer_store_dwordx4 v[0:3], v4, s[64:67], 0 offen")
    a("s_waitcnt lgkmcnt(0)")
    compute_setup(a, None)
    a("s_cmp_eq_u32 s27, 1")
    a(f"s_cbranch_scc1 {name}_ckv")
    for typ in ("Q", "KV"):
        if typ == "KV": a.label(f"{name}_ckv")
        gen_compute(a, typ)
        fin_stamp()
        a("s_endpgm")
    a.label(f"{name}_aux")
    a("s_waitcnt lgkmcnt(0)")
    if OPT.get("segstamp"):
        a("s_memtime s[18:19]") if False else None
        a("s_memtime s[96:97]"); a("s_waitcnt lgkmcnt(0)"); a("v_writelane_b32 v7, s96, 62")
    srd(a, 28, 6, 7, D * 3 * D * 2)
    a("s_cmp_eq_u32 s27, 1")
    a(f"s_cbranch_scc1 {name}_akv")
    for typ in ("Q", "KV"):
        if typ == "KV": a.label(f"{name}_akv")
        aux_setup_early(a, typ)
        gen_aux(a, typ)
        fin_stamp()
        a("s_endpgm")
    a.label(f"{name}_end")
    a("s_endpgm")
    return a.text() + kd(name, 256, 256), LDS_BYTES
```

```python
from asmlib import *
from layout import *
import struct
def fbits(x): return "0x%08x" % struct.unpack("<I", struct.pack("<f", x))[0]

def red32(a, v, t):
    for m in ("quad_perm:[1,0,3,2]", "quad_perm:[2,3,0,1]", "row_half_mirror", "row_mirror"):
        a("s_nop 1")
        a(f"v_add_f32_dpp v{v}, v{v}, v{v} {m} row_mask:0xf bank_mask:0xf")
    a(f"v_mov_b32 v{t}, v{v}")
    a("s_nop 1")
    a(f"v_permlane16_swap_b32 v{v}, v{t}")
    a("s_nop 1")
    a(f"v_add_f32 v{v}, v{v}, v{t}")

def gen_prep(name="prep_kernel", stamp=0):
    a = Asm(); a.L.append(head(name))
    if stamp: a("s_memrealtime s[100:101]")
    a("s_cmp_ge_u32 s2, 256")
    a(f"s_cbranch_scc1 {name}_end")
    a("s_load_dwordx2 s[4:5], s[0:1], 0")
    a("s_load_dwordx2 s[8:9], s[0:1], 16")
    a("s_load_dwordx2 s[16:17], s[0:1], 48")
    a("s_load_dwordx2 s[22:23], s[0:1], 72")
    a("v_lshrrev_b32 v1, 6, v0")
    a("v_and_b32 v15, 63, v0")
    a("v_readfirstlane_b32 s24, v1")
    a("v_lshrrev_b32 v23, 5, v15")
    a("v_and_b32 v24, 31, v15")
    a("v_lshlrev_b32 v14, 4, v15")
    a("s_lshl_b32 s80, s2, 3")
    a("s_lshl_b32 s81, s24, 1")
    a("s_add_u32 s80, s80, s81")
    a("v_add_u32 v30, s80, v23")
    a("v_mul_u32_u24 v31, 1280, v30")
    a("v_lshlrev_b32 v32, 4, v24")
    a("v_add_u32 v31, v31, v32")
    a("v_cmp_gt_u32 vcc, 16, v24")
    a("v_mov_b32 v33, 0x7f000000")
    a("s_lshl_b32 s60, s24, 8")
    a("s_add_u32 s60, s60, s2")
    a("s_mul_i32 s61, s60, 0x199a")
    a("s_lshr_b32 s61, s61, 16")
    a("s_mul_i32 s62, s61, 10")
    a("s_sub_u32 s62, s60, s62")
    a("v_cndmask_b32 v32, v33, v31, vcc")
    a("s_waitcnt lgkmcnt(0)")
    srd(a, 28, 4, 5, S * D * 2)
    a("buffer_load_dwordx4 v[36:39], v31, s[28:31], 0 offen")
    a("buffer_load_dwordx4 v[40:43], v31, s[28:31], 0 offen offset:512")
    a("buffer_load_dwordx4 v[44:47], v32, s[28:31], 0 offen offset:1024")
    a("s_mul_i32 s97, s61, 40")
    a("s_lshl_b32 s83, s62, 2")
    a("s_add_u32 s97, s97, s83")
    a("s_lshl_b32 s97, s97, 10")
    a("s_cmp_ge_u32 s60, 740")
    a("s_cselect_b32 s97, 0x7f000000, s97")
    srd(a, 56, 8, 9, D * D * 2)
    a("s_lshl_b32 s83, s61, 5")
    lab = a.newlabel("Lw2")
    a("s_cmp_lt_u32 s61, 20")
    a(f"s_cbranch_scc1 {lab}")
    srd(a, 56, 16, 17, F * D * 2)
    a("s_sub_u32 s83, s83, 640")
    a.label(lab)
    a("s_mul_i32 s83, s83, 1280")
    a("s_lshl_b32 s62, s62, 7")
    a("s_add_u32 s83, s83, s62")
    a("s_cmp_ge_u32 s60, 740")
    a("s_cselect_b32 s83, 0x7f000000, s83")
    a("v_lshrrev_b32 v96, 3, v15")
    a("v_mul_u32_u24 v96, 1280, v96")
    a("v_and_b32 v97, 7, v15")
    a("v_lshlrev_b32 v97, 4, v97")
    a("v_add_u32 v96, v96, v97")
    a("s_lshl_b32 s69, s24, 12")
    a("s_mov_b32 m0, s69")
    a("s_nop 0")
    for i in range(4):
        a("buffer_load_dwordx4 v96, s[56:59], s83 offen lds")
        if i < 3:
            a("s_add_u32 m0, m0, 1024")
            a(f"s_add_u32 s83, s83, {8*1280}")
    srd(a, 40, 22, 23, XNP_BYTES, WS_XNP)
    srd(a, 44, 22, 23, W2P_BYTES, WS_W2P)
    srd(a, 48, 22, 23, KV_BYTES, WS_KV)
    srd(a, 52, 22, 23, FLG_BYTES, WS_FLG)
    for i in range(4): a(f"v_mov_b32 v{100+i}, 0")
    l1 = a.newlabel("Lz"); l2 = a.newlabel("Lz")
    a("s_cmp_lg_u32 s24, 0")
    a(f"s_cbranch_scc1 {l1}")
    a("s_lshl_b32 s70, s2, 10")
    a("buffer_store_dwordx4 v[100:103], v14, s[48:51], s70 offen")
    a.label(l1)
    a("s_cmp_lg_u32 s24, 1")
    a(f"s_cbranch_scc1 {l2}")
    a("s_cmp_ge_u32 s2, 16")
    a(f"s_cbranch_scc1 {l2}")
    a("s_lshl_b32 s70, s2, 10")
    a("buffer_store_dwordx4 v[100:103], v14, s[52:55], s70 offen")
    a.label(l2)
    a("s_waitcnt vmcnt(4)") if False else None
    a("s_waitcnt vmcnt(0)")
    X = 50
    for i in range(12):
        a(f"v_lshlrev_b32 v{X+2*i}, 16, v{36+i}")
        a(f"v_and_b32 v{X+2*i+1}, 0xffff0000, v{36+i}")
    s0, s1 = 80, 81
    a(f"v_add_f32 v{s0}, v{X}, v{X+1}")
    a(f"v_add_f32 v{s1}, v{X+2}, v{X+3}")
    for i in range(4, 24, 2):
        a(f"v_add_f32 v{s0}, v{s0}, v{X+i}")
        a(f"v_add_f32 v{s1}, v{s1}, v{X+i+1}")
    a(f"v_add_f32 v{s0}, v{s0}, v{s1}")
    red32(a, s0, s1)
    a(f"v_mul_f32 v{s0}, {fbits(1/640)}, v{s0}")
    for i in range(24): a(f"v_sub_f32 v{X+i}, v{X+i}, v{s0}")
    a(f"v_cmp_gt_u32 vcc, 16, v24")
    q0, q1 = 82, 83
    a(f"v_mul_f32 v{q0}, v{X}, v{X}")
    a(f"v_mul_f32 v{q1}, v{X+1}, v{X+1}")
    for i in range(2, 16, 2):
        a(f"v_fmac_f32 v{q0}, v{X+i}, v{X+i}")
        a(f"v_fmac_f32 v{q1}, v{X+i+1}, v{X+i+1}")
    for i in range(16, 24): a(f"v_cndmask_b32 v{X+i}, 0, v{X+i}, vcc")
    for i in range(16, 24, 2):
        a(f"v_fmac_f32 v{q0}, v{X+i}, v{X+i}")
        a(f"v_fmac_f32 v{q1}, v{X+i+1}, v{X+i+1}")
    a(f"v_add_f32 v{q0}, v{q0}, v{q1}")
    red32(a, q0, q1)
    a(f"v_mul_f32 v{q0}, {fbits(1/640)}, v{q0}")
    a(f"v_add_f32 v{q0}, {fbits(1e-5)}, v{q0}")
    a(f"v_rsq_f32 v{q0}, v{q0}")
    a("s_nop 0")
    for i in range(24): a(f"v_mul_f32 v{X+i}, v{X+i}, v{q0}")
    for i in range(12): a(f"v_cvt_pk_bf16_f32 v{36+i}, v{X+2*i}, v{X+2*i+1}")
    a("v_lshrrev_b32 v84, 5, v30")
    a("v_mul_u32_u24 v84, 40960, v84")
    a("v_and_b32 v85, 31, v30")
    a("v_lshlrev_b32 v85, 4, v85")
    a("v_add_u32 v84, v84, v85")
    a("v_lshrrev_b32 v85, 1, v24")
    a("v_lshlrev_b32 v85, 10, v85")
    a("v_add_u32 v84, v84, v85")
    a("v_and_b32 v85, 1, v24")
    a("v_lshlrev_b32 v85, 9, v85")
    a("v_add_u32 v84, v84, v85")
    a("v_cmp_gt_u32 vcc, 16, v24")
    a("v_mov_b32 v86, 0x7f000000")
    a("s_mov_b32 s70, 16384"); a("s_mov_b32 s71, 32768")
    a("v_cndmask_b32 v86, v86, v84, vcc")
    a("buffer_store_dwordx4 v[36:39], v84, s[40:43], 0 offen")
    a("buffer_store_dwordx4 v[40:43], v84, s[40:43], s70 offen")
    a("buffer_store_dwordx4 v[44:47], v86, s[40:43], s71 offen")
    a("v_lshrrev_b32 v96, 5, v15")
    a("v_lshlrev_b32 v96, 4, v96")
    a("v_bfe_u32 v97, v15, 4, 1")
    a("v_lshlrev_b32 v97, 2, v97")
    a("v_add_u32 v96, v96, v97")
    a("v_bfe_u32 v97, v15, 2, 2")
    a("v_add_u32 v96, v96, v97")
    a("v_lshlrev_b32 v96, 7, v96")
    a("v_and_b32 v97, 3, v15")
    a("v_lshlrev_b32 v97, 3, v97")
    a("v_add_u32 v96, v96, v97")
    a("v_add_u32 v96, s69, v96")
    for nt in range(4):
        a(f"ds_read_b64_tr_b16 v[{104+4*nt}:{105+4*nt}], v96 offset:{nt*32}")
        a(f"ds_read_b64_tr_b16 v[{106+4*nt}:{107+4*nt}], v96 offset:{nt*32+1024}")
    a("s_waitcnt lgkmcnt(0)")
    for nt in range(4):
        a(f"buffer_store_dwordx4 v[{104+4*nt}:{107+4*nt}], v14, s[44:47], s97 offen offset:{nt*1024}")
    if stamp:
        a("s_lshl_b32 s3, s24, 0")
        a("s_waitcnt vmcnt(0) lgkmcnt(0)")
        a("s_memrealtime s[80:81]")
        a("s_waitcnt lgkmcnt(0)")
        a(f"s_add_u32 s64, s22, {WS_STAMP + 2*65536}"); a("s_addc_u32 s65, s23, 0"); a("s_mov_b32 s66, 65536"); a("s_mov_b32 s67, 0x00020000")
        a("s_lshl_b32 s82, s2, 2"); a("s_add_u32 s82, s82, s24"); a("s_lshl_b32 s82, s82, 4")
        a("v_mov_b32 v0, s100"); a("v_mov_b32 v1, s101"); a("v_mov_b32 v2, s80"); a("v_mov_b32 v3, s81"); a("v_mov_b32 v4, s82")
        a("s_mov_b64 exec, 1")
        a("buffer_store_dwordx4 v[0:3], v4, s[64:67], 0 offen")
    a.label(f"{name}_end")
    a("s_endpgm")
    return a.text() + kd(name, 128, 128), 16384
```

```python
S, D, F = 2048, 640, 1728
NBLK = 148
WS_ACT = 0
ACT_BYTES = 64 * NBLK * 1024
WS_W2P = 0xA00000
NT = 74
W2P_BYTES = NT * 40 * 1024
WS_KV = 0xE00000
KV_STRIDE = 8192
KV_REP = 4
KV_BYTES = 8 * KV_REP * KV_STRIDE
WS_STATS = 0xE60000
STATS_BYTES = 2048 * 16
WS_CSP = 0xE70000
CSP_BYTES = 3 * 5376 * 16
WS_FLG = 0xEC0000
FLG_BYTES = 16384
WS_XNP = 0x1000000
XNP_BYTES = 64 * 40 * 1024
WS_PQ = 0x1400000
PQ_BYTES = 64 * 8 * 5 * 1024
```

```python
from asmlib import *
from layout import *
import struct
def fbits(x): return "0x%08x" % struct.unpack("<I", struct.pack("<f", x))[0]

def red32(a, v, t):
    for m in ("quad_perm:[1,0,3,2]", "quad_perm:[2,3,0,1]", "row_half_mirror", "row_mirror"):
        a("s_nop 1")
        a(f"v_add_f32_dpp v{v}, v{v}, v{v} {m} row_mask:0xf bank_mask:0xf")
    a(f"v_mov_b32 v{t}, v{v}")
    a("s_nop 1")
    a(f"v_permlane16_swap_b32 v{v}, v{t}")
    a("s_nop 1")
    a(f"v_add_f32 v{v}, v{v}, v{t}")

def gen_prep(name="prep_kernel", stamp=0, code_pf=None):
    a = Asm(); a.L.append(head(name))
    if stamp: a("s_memrealtime s[100:101]")
    a("s_cmp_ge_u32 s2, 256")
    a(f"s_cbranch_scc1 {name}_end")
    a("s_load_dwordx2 s[4:5], s[0:1], 0")
    a("s_load_dwordx2 s[8:9], s[0:1], 16")
    a("s_load_dwordx2 s[16:17], s[0:1], 48")
    a("s_load_dwordx2 s[22:23], s[0:1], 72")
    a("v_lshrrev_b32 v1, 6, v0")
    a("v_and_b32 v15, 63, v0")
    a("v_readfirstlane_b32 s24, v1")
    a("v_lshrrev_b32 v23, 5, v15")
    a("v_and_b32 v24, 31, v15")
    a("v_lshlrev_b32 v14, 4, v15")
    a("s_lshl_b32 s80, s2, 3")
    a("s_lshl_b32 s81, s24, 1")
    a("s_add_u32 s80, s80, s81")
    a("v_add_u32 v30, s80, v23")
    a("v_mul_u32_u24 v31, 1280, v30")
    a("v_lshlrev_b32 v32, 4, v24")
    a("v_add_u32 v31, v31, v32")
    a("v_cmp_gt_u32 vcc, 16, v24")
    a("v_mov_b32 v33, 0x7f000000")
    a("s_lshl_b32 s60, s24, 8")
    a("s_add_u32 s60, s60, s2")
    a("s_mul_i32 s61, s60, 0x199a")
    a("s_lshr_b32 s61, s61, 16")
    a("s_mul_i32 s62, s61, 10")
    a("s_sub_u32 s62, s60, s62")
    a("v_cndmask_b32 v32, v33, v31, vcc")
    a("s_waitcnt lgkmcnt(0)")
    srd(a, 28, 4, 5, S * D * 2)
    a("buffer_load_dwordx4 v[36:39], v31, s[28:31], 0 offen")
    a("buffer_load_dwordx4 v[40:43], v31, s[28:31], 0 offen offset:512")
    a("buffer_load_dwordx4 v[44:47], v32, s[28:31], 0 offen offset:1024")
    if code_pf:
        first, last = code_pf
        a("s_getpc_b64 s[84:85]")
        lab = a.newlabel("Lpf"); a.label(lab)
        a(f"s_add_u32 s84, s84, {first}-{lab}")
        a("s_addc_u32 s85, s85, 0")
        a("s_lshr_b32 s86, s2, 3")
        a("s_lshl_b32 s86, s86, 11")
        a("s_lshl_b32 s87, s24, 9")
        a("s_add_u32 s86, s86, s87")
        a("v_lshlrev_b32 v110, 3, v15")
        a("v_add_u32 v110, s86, v110")
        a(f"s_mov_b32 s87, {last}-{first}-8")
        a("v_min_u32 v110, s87, v110")
        a("global_load_dwordx2 v[112:113], v110, s[84:85]")
        a("v_add_u32 v111, 0x10000, v110")
        a("v_min_u32 v111, s87, v111")
        a("global_load_dwordx2 v[114:115], v111, s[84:85]")
    a("s_mul_i32 s97, s61, 40")
    a("s_lshl_b32 s83, s62, 2")
    a("s_add_u32 s97, s97, s83")
    a("s_lshl_b32 s97, s97, 10")
    a("s_cmp_ge_u32 s60, 740")
    a("s_cselect_b32 s97, 0x7f000000, s97")
    srd(a, 56, 8, 9, D * D * 2)
    a("s_lshl_b32 s83, s61, 5")
    lab = a.newlabel("Lw2")
    a("s_cmp_lt_u32 s61, 20")
    a(f"s_cbranch_scc1 {lab}")
    srd(a, 56, 16, 17, F * D * 2)
    a("s_sub_u32 s83, s83, 640")
    a.label(lab)
    a("s_mul_i32 s83, s83, 1280")
    a("s_lshl_b32 s62, s62, 7")
    a("s_add_u32 s83, s83, s62")
    a("s_cmp_ge_u32 s60, 740")
    a("s_cselect_b32 s83, 0x7f000000, s83")
    a("v_lshrrev_b32 v96, 3, v15")
    a("v_mul_u32_u24 v96, 1280, v96")
    a("v_and_b32 v97, 7, v15")
    a("v_lshlrev_b32 v97, 4, v97")
    a("v_add_u32 v96, v96, v97")
    a("s_lshl_b32 s69, s24, 12")
    a("s_mov_b32 m0, s69")
    a("s_nop 0")
    for i in range(4):
        a("buffer_load_dwordx4 v96, s[56:59], s83 offen lds")
        if i < 3:
            a("s_add_u32 m0, m0, 1024")
            a(f"s_add_u32 s83, s83, {8*1280}")
    srd(a, 40, 22, 23, XNP_BYTES, WS_XNP)
    srd(a, 44, 22, 23, W2P_BYTES, WS_W2P)
    srd(a, 48, 22, 23, KV_BYTES, WS_KV)
    srd(a, 52, 22, 23, FLG_BYTES, WS_FLG)
    for i in range(4): a(f"v_mov_b32 v{100+i}, 0")
    l1 = a.newlabel("Lz"); l2 = a.newlabel("Lz")
    a("s_cmp_lg_u32 s24, 0")
    a(f"s_cbranch_scc1 {l1}")
    a("s_lshl_b32 s70, s2, 10")
    a("buffer_store_dwordx4 v[100:103], v14, s[48:51], s70 offen")
    a.label(l1)
    a("s_cmp_lg_u32 s24, 1")
    a(f"s_cbranch_scc1 {l2}")
    a("s_cmp_ge_u32 s2, 16")
    a(f"s_cbranch_scc1 {l2}")
    a("s_lshl_b32 s70, s2, 10")
    a("buffer_store_dwordx4 v[100:103], v14, s[52:55], s70 offen")
    a.label(l2)
    a("s_waitcnt vmcnt(4)") if False else None
    a("s_waitcnt vmcnt(0)")
    X = 50
    for i in range(12):
        a(f"v_lshlrev_b32 v{X+2*i}, 16, v{36+i}")
        a(f"v_and_b32 v{X+2*i+1}, 0xffff0000, v{36+i}")
    s0, s1 = 80, 81
    a(f"v_add_f32 v{s0}, v{X}, v{X+1}")
    a(f"v_add_f32 v{s1}, v{X+2}, v{X+3}")
    for i in range(4, 24, 2):
        a(f"v_add_f32 v{s0}, v{s0}, v{X+i}")
        a(f"v_add_f32 v{s1}, v{s1}, v{X+i+1}")
    a(f"v_add_f32 v{s0}, v{s0}, v{s1}")
    red32(a, s0, s1)
    a(f"v_mul_f32 v{s0}, {fbits(1/640)}, v{s0}")
    for i in range(24): a(f"v_sub_f32 v{X+i}, v{X+i}, v{s0}")
    a(f"v_cmp_gt_u32 vcc, 16, v24")
    q0, q1 = 82, 83
    a(f"v_mul_f32 v{q0}, v{X}, v{X}")
    a(f"v_mul_f32 v{q1}, v{X+1}, v{X+1}")
    for i in range(2, 16, 2):
        a(f"v_fmac_f32 v{q0}, v{X+i}, v{X+i}")
        a(f"v_fmac_f32 v{q1}, v{X+i+1}, v{X+i+1}")
    for i in range(16, 24): a(f"v_cndmask_b32 v{X+i}, 0, v{X+i}, vcc")
    for i in range(16, 24, 2):
        a(f"v_fmac_f32 v{q0}, v{X+i}, v{X+i}")
        a(f"v_fmac_f32 v{q1}, v{X+i+1}, v{X+i+1}")
    a(f"v_add_f32 v{q0}, v{q0}, v{q1}")
    red32(a, q0, q1)
    a(f"v_mul_f32 v{q0}, {fbits(1/640)}, v{q0}")
    a(f"v_add_f32 v{q0}, {fbits(1e-5)}, v{q0}")
    a(f"v_rsq_f32 v{q0}, v{q0}")
    a("s_nop 0")
    for i in range(24): a(f"v_mul_f32 v{X+i}, v{X+i}, v{q0}")
    for i in range(12): a(f"v_cvt_pk_bf16_f32 v{36+i}, v{X+2*i}, v{X+2*i+1}")
    a("v_lshrrev_b32 v84, 5, v30")
    a("v_mul_u32_u24 v84, 40960, v84")
    a("v_and_b32 v85, 31, v30")
    a("v_lshlrev_b32 v85, 4, v85")
    a("v_add_u32 v84, v84, v85")
    a("v_lshrrev_b32 v85, 1, v24")
    a("v_lshlrev_b32 v85, 10, v85")
    a("v_add_u32 v84, v84, v85")
    a("v_and_b32 v85, 1, v24")
    a("v_lshlrev_b32 v85, 9, v85")
    a("v_add_u32 v84, v84, v85")
    a("v_cmp_gt_u32 vcc, 16, v24")
    a("v_mov_b32 v86, 0x7f000000")
    a("s_mov_b32 s70, 16384"); a("s_mov_b32 s71, 32768")
    a("v_cndmask_b32 v86, v86, v84, vcc")
    a("buffer_store_dwordx4 v[36:39], v84, s[40:43], 0 offen")
    a("buffer_store_dwordx4 v[40:43], v84, s[40:43], s70 offen")
    a("buffer_store_dwordx4 v[44:47], v86, s[40:43], s71 offen")
    a("v_lshrrev_b32 v96, 5, v15")
    a("v_lshlrev_b32 v96, 4, v96")
    a("v_bfe_u32 v97, v15, 4, 1")
    a("v_lshlrev_b32 v97, 2, v97")
    a("v_add_u32 v96, v96, v97")
    a("v_bfe_u32 v97, v15, 2, 2")
    a("v_add_u32 v96, v96, v97")
    a("v_lshlrev_b32 v96, 7, v96")
    a("v_and_b32 v97, 3, v15")
    a("v_lshlrev_b32 v97, 3, v97")
    a("v_add_u32 v96, v96, v97")
    a("v_add_u32 v96, s69, v96")
    for nt in range(4):
        a(f"ds_read_b64_tr_b16 v[{104+4*nt}:{105+4*nt}], v96 offset:{nt*32}")
        a(f"ds_read_b64_tr_b16 v[{106+4*nt}:{107+4*nt}], v96 offset:{nt*32+1024}")
    a("s_waitcnt lgkmcnt(0)")
    for nt in range(4):
        a(f"buffer_store_dwordx4 v[{104+4*nt}:{107+4*nt}], v14, s[44:47], s97 offen offset:{nt*1024}")
    if stamp:
        a("s_lshl_b32 s3, s24, 0")
        a("s_waitcnt vmcnt(0) lgkmcnt(0)")
        a("s_memrealtime s[80:81]")
        a("s_waitcnt lgkmcnt(0)")
        a(f"s_add_u32 s64, s22, {WS_STAMP + 2*65536}"); a("s_addc_u32 s65, s23, 0"); a("s_mov_b32 s66, 65536"); a("s_mov_b32 s67, 0x00020000")
        a("s_lshl_b32 s82, s2, 2"); a("s_add_u32 s82, s82, s24"); a("s_lshl_b32 s82, s82, 4")
        a("v_mov_b32 v0, s100"); a("v_mov_b32 v1, s101"); a("v_mov_b32 v2, s80"); a("v_mov_b32 v3, s81"); a("v_mov_b32 v4, s82")
        a("s_mov_b64 exec, 1")
        a("buffer_store_dwordx4 v[0:3], v4, s[64:67], 0 offen")
    a.label(f"{name}_end")
    a("s_endpgm")
    return a.text() + kd(name, 128, 128), 16384
```

```python
from asmlib import *
from layout import *
import struct
def fbits(x): return "0x%08x" % struct.unpack("<I", struct.pack("<f", x))[0]

def red32(a, v, t):
    for m in ("quad_perm:[1,0,3,2]", "quad_perm:[2,3,0,1]", "row_half_mirror", "row_mirror"):
        a("s_nop 1")
        a(f"v_add_f32_dpp v{v}, v{v}, v{v} {m} row_mask:0xf bank_mask:0xf")
    a(f"v_mov_b32 v{t}, v{v}")
    a("s_nop 1")
    a(f"v_permlane16_swap_b32 v{v}, v{t}")
    a("s_nop 1")
    a(f"v_add_f32 v{v}, v{v}, v{t}")

def gen_prep(name="prep_kernel", stamp=0, code_pf=None, w_pf=False):
    a = Asm(); a.L.append(head(name))
    if stamp: a("s_memrealtime s[100:101]")
    a("s_cmp_ge_u32 s2, 256")
    a(f"s_cbranch_scc1 {name}_end")
    a("s_load_dwordx2 s[4:5], s[0:1], 0")
    a("s_load_dwordx2 s[8:9], s[0:1], 16")
    a("s_load_dwordx2 s[16:17], s[0:1], 48")
    a("s_load_dwordx2 s[22:23], s[0:1], 72")
    a("v_lshrrev_b32 v1, 6, v0")
    a("v_and_b32 v15, 63, v0")
    a("v_readfirstlane_b32 s24, v1")
    a("v_lshrrev_b32 v23, 5, v15")
    a("v_and_b32 v24, 31, v15")
    a("v_lshlrev_b32 v14, 4, v15")
    a("s_lshl_b32 s80, s2, 3")
    a("s_lshl_b32 s81, s24, 1")
    a("s_add_u32 s80, s80, s81")
    a("v_add_u32 v30, s80, v23")
    a("v_mul_u32_u24 v31, 1280, v30")
    a("v_lshlrev_b32 v32, 4, v24")
    a("v_add_u32 v31, v31, v32")
    a("v_cmp_gt_u32 vcc, 16, v24")
    a("v_mov_b32 v33, 0x7f000000")
    a("s_lshl_b32 s60, s24, 8")
    a("s_add_u32 s60, s60, s2")
    a("s_mul_i32 s61, s60, 0x199a")
    a("s_lshr_b32 s61, s61, 16")
    a("s_mul_i32 s62, s61, 10")
    a("s_sub_u32 s62, s60, s62")
    a("v_cndmask_b32 v32, v33, v31, vcc")
    a("s_waitcnt lgkmcnt(0)")
    srd(a, 28, 4, 5, S * D * 2)
    a("buffer_load_dwordx4 v[36:39], v31, s[28:31], 0 offen")
    a("buffer_load_dwordx4 v[40:43], v31, s[28:31], 0 offen offset:512")
    a("buffer_load_dwordx4 v[44:47], v32, s[28:31], 0 offen offset:1024")
    if code_pf:
        first, last = code_pf
        a("s_getpc_b64 s[84:85]")
        lab = a.newlabel("Lpf"); a.label(lab)
        a(f"s_add_u32 s84, s84, {first}-{lab}")
        a("s_addc_u32 s85, s85, 0")
        a("s_lshr_b32 s86, s2, 3")
        a("s_lshl_b32 s86, s86, 11")
        a("s_lshl_b32 s87, s24, 9")
        a("s_add_u32 s86, s86, s87")
        a("v_lshlrev_b32 v110, 3, v15")
        a("v_add_u32 v110, s86, v110")
        a(f"s_mov_b32 s87, {last}-{first}-8")
        a("v_min_u32 v110, s87, v110")
        a("global_load_dwordx2 v[112:113], v110, s[84:85]")
        a("v_add_u32 v111, 0x10000, v110")
        a("v_min_u32 v111, s87, v111")
        a("global_load_dwordx2 v[114:115], v111, s[84:85]")
    if w_pf:
        a("s_load_dwordx2 s[88:89], s[0:1], 8")
        a("s_load_dwordx4 s[92:95], s[0:1], 32")
        a("s_lshl_b32 s86, s2, 2"); a("s_add_u32 s86, s86, s24")
        a("s_lshl_b32 s86, s86, 13")
        a("v_lshlrev_b32 v116, 7, v15")
        a("s_waitcnt lgkmcnt(0)")
        for (lo, hi, nb, rg) in ((88, 89, D*3*D*2, 64), (92, 93, D*F*2, 68), (94, 95, D*F*2, 72)):
            srd(a, rg, lo, hi, nb)
            a(f"buffer_load_dword v{117 + (rg-64)//4}, v116, s[{rg}:{rg+3}], s86 offen")
    a("s_mul_i32 s97, s61, 40")
    a("s_lshl_b32 s83, s62, 2")
    a("s_add_u32 s97, s97, s83")
    a("s_lshl_b32 s97, s97, 10")
    a("s_cmp_ge_u32 s60, 740")
    a("s_cselect_b32 s97, 0x7f000000, s97")
    srd(a, 56, 8, 9, D * D * 2)
    a("s_lshl_b32 s83, s61, 5")
    lab = a.newlabel("Lw2")
    a("s_cmp_lt_u32 s61, 20")
    a(f"s_cbranch_scc1 {lab}")
    srd(a, 56, 16, 17, F * D * 2)
    a("s_sub_u32 s83, s83, 640")
    a.label(lab)
    a("s_mul_i32 s83, s83, 1280")
    a("s_lshl_b32 s62, s62, 7")
    a("s_add_u32 s83, s83, s62")
    a("s_cmp_ge_u32 s60, 740")
    a("s_cselect_b32 s83, 0x7f000000, s83")
    a("v_lshrrev_b32 v96, 3, v15")
    a("v_mul_u32_u24 v96, 1280, v96")
    a("v_and_b32 v97, 7, v15")
    a("v_lshlrev_b32 v97, 4, v97")
    a("v_add_u32 v96, v96, v97")
    a("s_lshl_b32 s69, s24, 12")
    a("s_mov_b32 m0, s69")
    a("s_nop 0")
    for i in range(4):
        a("buffer_load_dwordx4 v96, s[56:59], s83 offen lds")
        if i < 3:
            a("s_add_u32 m0, m0, 1024")
            a(f"s_add_u32 s83, s83, {8*1280}")
    srd(a, 40, 22, 23, XNP_BYTES, WS_XNP)
    srd(a, 44, 22, 23, W2P_BYTES, WS_W2P)
    srd(a, 48, 22, 23, KV_BYTES, WS_KV)
    srd(a, 52, 22, 23, FLG_BYTES, WS_FLG)
    for i in range(4): a(f"v_mov_b32 v{100+i}, 0")
    l1 = a.newlabel("Lz"); l2 = a.newlabel("Lz")
    a("s_cmp_lg_u32 s24, 0")
    a(f"s_cbranch_scc1 {l1}")
    a("s_lshl_b32 s70, s2, 10")
    a("buffer_store_dwordx4 v[100:103], v14, s[48:51], s70 offen")
    a.label(l1)
    a("s_cmp_lg_u32 s24, 1")
    a(f"s_cbranch_scc1 {l2}")
    a("s_cmp_ge_u32 s2, 16")
    a(f"s_cbranch_scc1 {l2}")
    a("s_lshl_b32 s70, s2, 10")
    a("buffer_store_dwordx4 v[100:103], v14, s[52:55], s70 offen")
    a.label(l2)
    a("s_waitcnt vmcnt(4)") if False else None
    a("s_waitcnt vmcnt(0)")
    X = 50
    for i in range(12):
        a(f"v_lshlrev_b32 v{X+2*i}, 16, v{36+i}")
        a(f"v_and_b32 v{X+2*i+1}, 0xffff0000, v{36+i}")
    s0, s1 = 80, 81
    a(f"v_add_f32 v{s0}, v{X}, v{X+1}")
    a(f"v_add_f32 v{s1}, v{X+2}, v{X+3}")
    for i in range(4, 24, 2):
        a(f"v_add_f32 v{s0}, v{s0}, v{X+i}")
        a(f"v_add_f32 v{s1}, v{s1}, v{X+i+1}")
    a(f"v_add_f32 v{s0}, v{s0}, v{s1}")
    red32(a, s0, s1)
    a(f"v_mul_f32 v{s0}, {fbits(1/640)}, v{s0}")
    for i in range(24): a(f"v_sub_f32 v{X+i}, v{X+i}, v{s0}")
    a(f"v_cmp_gt_u32 vcc, 16, v24")
    q0, q1 = 82, 83
    a(f"v_mul_f32 v{q0}, v{X}, v{X}")
    a(f"v_mul_f32 v{q1}, v{X+1}, v{X+1}")
    for i in range(2, 16, 2):
        a(f"v_fmac_f32 v{q0}, v{X+i}, v{X+i}")
        a(f"v_fmac_f32 v{q1}, v{X+i+1}, v{X+i+1}")
    for i in range(16, 24): a(f"v_cndmask_b32 v{X+i}, 0, v{X+i}, vcc")
    for i in range(16, 24, 2):
        a(f"v_fmac_f32 v{q0}, v{X+i}, v{X+i}")
        a(f"v_fmac_f32 v{q1}, v{X+i+1}, v{X+i+1}")
    a(f"v_add_f32 v{q0}, v{q0}, v{q1}")
    red32(a, q0, q1)
    a(f"v_mul_f32 v{q0}, {fbits(1/640)}, v{q0}")
    a(f"v_add_f32 v{q0}, {fbits(1e-5)}, v{q0}")
    a(f"v_rsq_f32 v{q0}, v{q0}")
    a("s_nop 0")
    for i in range(24): a(f"v_mul_f32 v{X+i}, v{X+i}, v{q0}")
    for i in range(12): a(f"v_cvt_pk_bf16_f32 v{36+i}, v{X+2*i}, v{X+2*i+1}")
    a("v_lshrrev_b32 v84, 5, v30")
    a("v_mul_u32_u24 v84, 40960, v84")
    a("v_and_b32 v85, 31, v30")
    a("v_lshlrev_b32 v85, 4, v85")
    a("v_add_u32 v84, v84, v85")
    a("v_lshrrev_b32 v85, 1, v24")
    a("v_lshlrev_b32 v85, 10, v85")
    a("v_add_u32 v84, v84, v85")
    a("v_and_b32 v85, 1, v24")
    a("v_lshlrev_b32 v85, 9, v85")
    a("v_add_u32 v84, v84, v85")
    a("v_cmp_gt_u32 vcc, 16, v24")
    a("v_mov_b32 v86, 0x7f000000")
    a("s_mov_b32 s70, 16384"); a("s_mov_b32 s71, 32768")
    a("v_cndmask_b32 v86, v86, v84, vcc")
    a("buffer_store_dwordx4 v[36:39], v84, s[40:43], 0 offen")
    a("buffer_store_dwordx4 v[40:43], v84, s[40:43], s70 offen")
    a("buffer_store_dwordx4 v[44:47], v86, s[40:43], s71 offen")
    a("v_lshrrev_b32 v96, 5, v15")
    a("v_lshlrev_b32 v96, 4, v96")
    a("v_bfe_u32 v97, v15, 4, 1")
    a("v_lshlrev_b32 v97, 2, v97")
    a("v_add_u32 v96, v96, v97")
    a("v_bfe_u32 v97, v15, 2, 2")
    a("v_add_u32 v96, v96, v97")
    a("v_lshlrev_b32 v96, 7, v96")
    a("v_and_b32 v97, 3, v15")
    a("v_lshlrev_b32 v97, 3, v97")
    a("v_add_u32 v96, v96, v97")
    a("v_add_u32 v96, s69, v96")
    for nt in range(4):
        a(f"ds_read_b64_tr_b16 v[{104+4*nt}:{105+4*nt}], v96 offset:{nt*32}")
        a(f"ds_read_b64_tr_b16 v[{106+4*nt}:{107+4*nt}], v96 offset:{nt*32+1024}")
    a("s_waitcnt lgkmcnt(0)")
    for nt in range(4):
        a(f"buffer_store_dwordx4 v[{104+4*nt}:{107+4*nt}], v14, s[44:47], s97 offen offset:{nt*1024}")
    if stamp:
        a("s_lshl_b32 s3, s24, 0")
        a("s_waitcnt vmcnt(0) lgkmcnt(0)")
        a("s_memrealtime s[80:81]")
        a("s_waitcnt lgkmcnt(0)")
        a(f"s_add_u32 s64, s22, {WS_STAMP + 2*65536}"); a("s_addc_u32 s65, s23, 0"); a("s_mov_b32 s66, 65536"); a("s_mov_b32 s67, 0x00020000")
        a("s_lshl_b32 s82, s2, 2"); a("s_add_u32 s82, s82, s24"); a("s_lshl_b32 s82, s82, 4")
        a("v_mov_b32 v0, s100"); a("v_mov_b32 v1, s101"); a("v_mov_b32 v2, s80"); a("v_mov_b32 v3, s81"); a("v_mov_b32 v4, s82")
        a("s_mov_b64 exec, 1")
        a("buffer_store_dwordx4 v[0:3], v4, s[64:67], 0 offen")
    a.label(f"{name}_end")
    a("s_endpgm")
    return a.text() + kd(name, 128, 128), 16384
```

```python
from asmlib import *
from layout import *
import struct

RING0 = 0
XTRA = 114688
ZL = 162816
LDS_BYTES = 163840
RING_LIM = {0: 98304, 1: 114688}
FR = XTRA
KVT_P = 155648
KVC = XTRA
KVF = XTRA + 8192
PD, NB = 4, 5
OPT = dict(mapv=0)
SPIN_MAX = 20000
STORE_FLAGS = ""
def fbits(x): return "0x%08x" % struct.unpack("<I", struct.pack("<f", x))[0]
LOG2E = 1.4426950408889634

class Q:
    def __init__(self): self.n = 0
    def issue(self, k=1):
        self.n += k
        return self.n
    def left(self, seq): return self.n - seq

def passes_for(typ):
    if typ == "Q": return [("q", 3, True), ("G", 2, True), ("U", 2, True), ("G", 2, True), ("U", 2, True)]
    return [("k", 3, False), ("v", 2, False), ("G", 2, True), ("U", 2, True), ("H", 2, True)]

class Plan:
    def __init__(self, typ):
        self.typ = typ
        self.ps = passes_for(typ)
        st = []
        for X in range(5):
            for b in range(5): st.append(dict(X=X, t0=8 * b, nt=8, size=24576 if X == 0 else 16384))
        p = RING0
        for s in st:
            lim = RING0 + RING_LIM[min(s['X'], 1)]
            if p + s['size'] > lim: p = RING0
            s['pos'] = p; p += s['size']
        for i, s in enumerate(st):
            e = 0
            for i2 in range(i):
                s2 = st[i2]
                if s2['pos'] < s['pos'] + s['size'] and s['pos'] < s2['pos'] + s2['size']: e = max(e, i2 + 3)
            s['earliest'] = e
        self.st = st; self.ns = len(st)
        items = []
        for si, s in enumerate(st):
            X = s['X']; T = self.ps[X][1]
            if X == 1 and s['t0'] == 0:
                for tau in range(T):
                    for i in range(s['nt']): items.append((X, s['t0'] + i, tau, si))
            else:
                for i in range(s['nt']):
                    for tau in range(T): items.append((X, s['t0'] + i, tau, si))
        self.items = items
        self.bpos = {0: -1}
        for g in range(len(items) - PD):
            if items[g + PD][3] != items[g + PD - 1][3]: self.bpos[items[g + PD][3]] = g
        last = {}
        for f, (X, t, tau, si) in enumerate(items):
            if t == 39: last[(X, tau)] = f
        self.last = last
        self.endp = {X: max(last[(X, tau)] for tau in range(self.ps[X][1])) for X in range(5)}
    def seg_after(self, f):
        return min(b for b, g in self.bpos.items() if g >= f + PD + 2) + 1

VA = 0
SA, SB, BBUF = 160, 192, 224
V_AD0, V_AD1, V_TR20, V_L16 = 244, 245, 246, 247
TP = 248
V_FW, V_Z, V_ZT, V_TR3 = 252, 253, 254, 255

def acc_regs(typ, X, tau):
    if X == 0: return [SA, SA + 16, SB][tau]
    if X == 1: return [SB + 16, SB][tau]
    return (SB if X % 2 == 1 else SA) + 16 * tau

class Compute:
    def __init__(self, a, typ):
        self.a = a; self.typ = typ
        self.P = Plan(typ)
        self.lq = Q(); self.pend = {}
    def set_addr(self, si):
        a = self.a; s = self.P.st[si]; T = self.P.ps[s['X']][1]
        if T == 2:
            a(f"v_add_u32 v{V_AD0}, {s['pos']}, v{V_TR20}")
            a(f"v_xor_b32 v{V_AD1}, 64, v{V_AD0}")
        else:
            a(f"v_add_u32 v{V_AD0}, {s['pos']}, v{V_TR3}")
    def reads(self, f):
        a = self.a; X, t, tau, si = self.P.items[f]; T = self.P.ps[X][1]
        b = BBUF + 4 * (f % NB)
        tl = t - self.P.st[si]['t0']
        if T == 2: reg, o1, o2 = (V_AD0 if tau == 0 else V_AD1), tl * 2048, tl * 2048 + 512
        else: reg, o1, o2 = V_AD0, tl * 3072 + tau * 64, tl * 3072 + tau * 64 + 768
        a(f"ds_read_b64_tr_b16 {vr(b,2)}, v{reg} offset:{o1}")
        a(f"ds_read_b64_tr_b16 {vr(b+2,2)}, v{reg} offset:{o2}")
        self.pend[f] = self.lq.issue(2)
    def mfma(self, f):
        a = self.a; X, t, tau, si = self.P.items[f]; sw = self.P.ps[X][2]
        if OPT.get("w2") and f % 2 == 1 and f + 0 in self.pend and getattr(self, "covered", -1) >= f: pass
        else:
            tgt = f + 1 if (OPT.get("w2") and f + 1 in self.pend and f % 2 == 0) else f
            a(f"s_waitcnt lgkmcnt({min(self.lq.left(self.pend[tgt]), 15)})")
            self.covered = tgt
        acc = vr(acc_regs(self.typ, X, tau), 16)
        c = "0" if t == 0 else acc
        w = vr(BBUF + 4 * (f % NB), 4); x = vr(VA + 4 * t, 4)
        if sw: a(f"v_mfma_f32_32x32x16_bf16 {acc}, {w}, {x}, {c}")
        else: a(f"v_mfma_f32_32x32x16_bf16 {acc}, {x}, {w}, {c}")

def a_load(a, t):
    if t % 4 == 0 and t > 0: a("s_add_u32 s72, s72, 4096")
    a(f"buffer_load_dwordx4 {vr(VA+4*t,4)}, v{V_L16}, s[28:31], s72 offen offset:{(t%4)*1024}")

def f_sig(base, n=16):
    g = []
    for q in range(0, n, 4):
        r = range(base + q, base + q + 4)
        g.append([f"v_mul_f32 v{i}, s97, v{i}" for i in r])
        g.append([f"v_exp_f32 v{i}, v{i}" for i in r][:2]); g.append([f"v_exp_f32 v{i}, v{i}" for i in r][2:])
        g.append([f"v_add_f32 v{i}, 1.0, v{i}" for i in r])
        g.append([f"v_rcp_f32 v{i}, v{i}" for i in r][:2]); g.append([f"v_rcp_f32 v{i}, v{i}" for i in r][2:])
    return split2(g)
def f_phi(base, n, masked=False):
    g = []
    for q in range(0, n, 4):
        r = list(range(base + q, base + q + 4)); t = [TP + k for k in range(4)]
        steps = [[f"v_mul_f32 v{t[k]}, s98, v{r[k]}" for k in range(4)],
                 [f"v_exp_f32_e64 v{t[k]}, v{t[k]} clamp" for k in range(2)],
                 [f"v_exp_f32_e64 v{t[k]}, v{t[k]} clamp" for k in range(2, 4)],
                 [f"v_add_f32 v{t[k]}, s99, v{t[k]}" for k in range(4)],
                 [f"v_add_f32 v{r[k]}, v{r[k]}, v{t[k]}" for k in range(4)],
                 [f"v_max_f32 v{r[k]}, v{r[k]}, v{t[k]}" for k in range(4)]]
        if masked:
            for k in (4, 5): steps[k] = ["s_mov_b64 exec, s[76:77]"] + steps[k] + ["s_mov_b64 exec, -1"]
            g += split2(steps[:4]) + steps[4:]
        else: g += split2(steps)
    return g
def split2(groups):
    out = []
    for g in groups:
        for i in range(len(g)): out.append(g[i:i+1])
    return out
def f_pack8(b):
    return [[f"v_cvt_pk_bf16_f32 v{b}, v{b}, v{b+1}", f"v_cvt_pk_bf16_f32 v{b+1}, v{b+2}, v{b+3}"],
            [f"v_cvt_pk_bf16_f32 v{b+2}, v{b+4}, v{b+5}", f"v_cvt_pk_bf16_f32 v{b+3}, v{b+6}, v{b+7}"]]
def f_gstore(b, srd_, soff_code, imm):
    return [soff_code + [f"buffer_store_dwordx4 {vr(b,4)}, v{V_L16}, s[{srd_}:{srd_+3}], s81 offen offset:{imm} {STORE_FLAGS}"]]
def act_soff(blk_code, add=0):
    c = list(blk_code) + ["s_lshl_b32 s81, s25, 2", "s_add_u32 s81, s81, s24", f"s_mul_i32 s81, s81, {NBLK}", "s_add_u32 s81, s81, s82", "s_lshl_b32 s81, s81, 10"]
    if add: c.append(f"s_add_u32 s81, s81, {add}")
    return c
def f_zsum(b, n, first):
    g = []
    for i in range(n):
        if first and i == 0: g.append([f"v_mov_b32 v{V_Z}, v{b}"])
        else: g.append([f"v_add_f32 v{V_Z}, v{V_Z}, v{b+i}"])
    return split2([[x[0] for x in g]])
def f_zwrite(tile):
    g = [[f"v_mov_b32 v{V_ZT}, v{V_Z}", "s_nop 1", f"v_permlane32_swap_b32 v{V_Z}, v{V_ZT}"],
         [f"s_lshl_b32 s80, s24, {8 if tile < 2 else 6}", f"v_add_f32 v{V_Z}, v{V_Z}, v{V_ZT}", f"v_bfe_u32 v{V_ZT}, v{V_L16}, 4, 5"],
         [f"v_lshlrev_b32 v{V_ZT}, 2, v{V_ZT}", f"v_add_u32 v{V_ZT}, s80, v{V_ZT}"],
         [f"v_add_u32 v{V_ZT}, {ZL + 128*tile if tile < 2 else KVT_P + 6720}, v{V_ZT}"] +
         (["s_mov_b64 exec, 0xffff"] if tile == 2 else []) + [f"ds_write_b32 v{V_ZT}, v{V_Z}", "@lds"] + (["s_mov_b64 exec, -1"] if tile == 2 else [])]
    return g
def f_frag(b, tile, h):
    return [[f"ds_write_b128 v{V_FW}, {vr(b,4)} offset:{(tile*2+h)*4096}", "@lds"]]

def gen_compute(a, typ):
    C = Compute(a, typ); P = C.P
    bat = {g: b for b, g in P.bpos.items() if b >= 1}
    AL0 = OPT.get("al0", 8)
    issued = [AL0]
    L, E = P.last, P.endp
    fill = []
    def add(groups, lo, hi):
        for g in groups: fill.append([lo, hi, g])
    R_ = lambda X, tau: acc_regs(typ, X, tau)
    hblk = {}
    if typ == "Q":
        pq_soff = lambda blk: ["s_lshl_b32 s81, s25, 2", "s_add_u32 s81, s81, s24", "s_lshl_b32 s81, s81, 3", "s_add_u32 s81, s81, s26", "s_mul_i32 s81, s81, 5120"] + ([f"s_add_u32 s81, s81, 4096"] if blk == 4 else [])
        b = R_(0, 2)
        add(f_phi(b, 8) + f_pack8(b) + f_gstore(b, 44, pq_soff(4), 0), E[0] + 3, E[0] + 7)
        for tau in range(2):
            b = R_(0, tau)
            gs = f_phi(b, 16)
            for h in range(2): gs += f_pack8(b + 8 * h) + f_gstore(b + 8 * h, 44, pq_soff(0), (2 * tau + h) * 1024)
            add(gs, E[0] + 9, E[1] - 2)
        GU = [(1, 2, ["s_lshl_b32 s82, s26, 3", "s_add_u32 s82, s82, 40"]), (3, 4, ["s_lshl_b32 s82, s26, 3", "s_add_u32 s82, s82, 44"])]
    else:
        b = R_(0, 2)
        gs = f_phi(b, 16, masked=True) + f_zsum(b, 16, True) + f_zwrite(2)
        for h in range(2): gs += f_pack8(b + 8 * h) + f_frag(b + 8 * h, 2, h)
        add(gs, E[0] + 3, E[0] + 7)
        for tau in range(2):
            b = R_(0, tau)
            gs = f_phi(b, 16) + f_zsum(b, 16, True) + f_zwrite(tau)
            for h in range(2): gs += f_pack8(b + 8 * h) + f_frag(b + 8 * h, tau, h)
            add(gs, E[0] + 9, E[1] - 2)
        vb = ["s_nop 7"]
        for tv in range(2):
            b = R_(1, tv)
            for h in range(2):
                for g in f_pack8(b + 8 * h) + f_frag(b + 8 * h, 3 + tv, h): vb += g
        vb += ["s_waitcnt lgkmcnt(0)", "@bar"]
        KVB = vb
        GU = [(2, 3, ["s_lshl_b32 s82, s26, 2", "s_add_u32 s82, s82, 104"])]
    boundary = {}
    if typ == 'KV': boundary[E[1]] = KVB
    def hpack(Xu, tau, blk, lo, hi):
        b = R_(Xu, tau); gs = []
        for h in range(2): gs += f_pack8(b + 8 * h) + f_gstore(b + 8 * h, 40, act_soff(blk, 0), (2 * tau + h) * 1024)
        add(gs, lo, hi)
    for Xg, Xu, blk in GU:
        add(f_sig(R_(Xg, 0)) + f_sig(R_(Xg, 1)), E[Xg] + 4, E[Xu] - 1)
        boundary[E[Xu]] = ["s_nop 7"] + [f"v_mul_f32 v{R_(Xu,tt)+i}, v{R_(Xu,tt)+i}, v{R_(Xg,tt)+i}" for tt in range(2) for i in range(16)]
        if Xu < 4:
            hpack(Xu, 0, blk, E[Xu] + 1, E[Xu + 1] - 2); hpack(Xu, 1, blk, E[Xu] + 1, E[Xu + 1] - 2)
        else: hblk['last'] = (Xu, blk)
    fill.sort(key=lambda e: e[0])
    cstamp(a, 0)
    a("s_barrier")
    C.set_addr(0)
    for i in range(PD): C.reads(i)
    seen = set()
    NI = len(P.items)
    def emit_group(g):
        for ins in g:
            if ins == "@lds": C.lq.issue(1)
            elif ins == "@bar": a("s_barrier")
            else: a(ins)
    for f in range(NI):
        X, t, tau, si = P.items[f]
        if f in bat:
            cstamp(a, bat[f])
            a("s_barrier"); C.set_addr(bat[f])
        if f + PD < NI: C.reads(f + PD)
        if X == 0 and t not in seen:
            seen.add(t)
            a(f"s_waitcnt vmcnt({issued[0] - 1 - max(seen)})")
        C.mfma(f)
        if X == 0 and issued[0] < 40 and (f % OPT.get('arate', 2) == 1 or issued[0] < t + 6):
            a_load(a, issued[0]); issued[0] += 1
        avail = [e for e in fill if e[0] <= f]
        budget = OPT.get("fslots", 3)
        def slots(g): return sum((2 if (x.startswith("v_exp") or x.startswith("v_rcp")) else (3 if x.startswith("ds_write_b128") else (0.5 if x.startswith("s_") else 1))) for x in g if x != "@lds")
        while avail and (budget - slots(avail[0][2]) >= 0 or urgent(fill, f)):
            e = avail.pop(0); fill.remove(e); emit_group(e[2]); budget -= slots(e[2])
        late = [e for e in fill if e[1] < f]
        assert not late, (typ, f, late[:2])
        if f in boundary:
            assert not [e for e in fill if e[1] <= f]
            a("s_nop 3"); emit_group(boundary[f])
        if typ == "Q" and f == E[1] + 8: a("s_waitcnt vmcnt(0)")
    for e in fill: emit_group(e[2])
    if 'last' in hblk:
        Xu, blk = hblk['last']
        for tau in range(2):
            b = R_(Xu, tau)
            for h in range(2):
                for g in f_pack8(b + 8 * h) + f_gstore(b + 8 * h, 40, act_soff(blk, 0), (2 * tau + h) * 1024): emit_group(g)
    else:
        a("s_nop 7"); a("s_nop 3")
        g0, u0 = R_(4, 0), R_(4, 1)
        for g in f_sig(g0): emit_group(g)
        for i in range(16): a(f"v_mul_f32 v{u0+i}, v{u0+i}, v{g0+i}")
        blk = ["s_lshl_b32 s82, s26, 1", "s_add_u32 s82, s82, 136", "s_cmp_ge_u32 s26, 6", "s_cselect_b32 s82, 0x100000, s82"]
        for h in range(2):
            for g in f_pack8(u0 + 8 * h) + f_gstore(u0 + 8 * h, 40, act_soff(blk, 0), h * 1024): emit_group(g)
    cstamp(a, 25)
    if OPT.get("cstamp"):
        for k in range(26): a(f"v_writelane_b32 v1, s{sreg_of(k)}, {k}")
        a(f"s_add_u32 s64, s22, {WS_STAMP}"); a("s_addc_u32 s65, s23, 0"); a("s_mov_b32 s66, 0x100000"); a("s_mov_b32 s67, 0x00020000")
        a("s_lshl_b32 s82, s2, 2"); a("s_add_u32 s82, s82, s24"); a("s_lshl_b32 s82, s82, 8")
        a(f"v_mbcnt_lo_u32_b32 v0, -1, 0"); a("v_mbcnt_hi_u32_b32 v0, -1, v0"); a("v_lshlrev_b32 v0, 2, v0")
        a("buffer_store_dword v1, v0, s[64:67], s82 offen")

def urgent(fill, f):
    cum = 0
    for lo, hi, g in sorted(fill, key=lambda e: e[1]):
        cum += len(g)
        if lo <= f and cum > 3 * (hi - f): return True
    return False
def sreg_of(k): return 48 + k if k < 24 else 78 + (k - 24)
def cstamp(a, k):
    if OPT.get("cstamp") and k < 26:
        a("s_memtime s[100:101]")
        a("s_waitcnt lgkmcnt(0)")
        a(f"s_mov_b32 s{sreg_of(k)}, s100")
def compute_setup(a, typ):
    srd(a, 28, 22, 23, XNP_BYTES, WS_XNP)
    L = 248
    a(f"v_and_b32 v{L}, 63, v0")
    a(f"v_lshlrev_b32 v{V_L16}, 4, v{L}")
    a("s_lshl_b32 s72, s25, 2")
    a("s_add_u32 s72, s72, s24")
    a("s_mul_i32 s72, s72, 40960")
    for t in range(OPT.get("al0", 8)): a_load(a, t)
    t1, t2, t3, t4, t5, t6 = 249, 250, 251, 252, 253, 254
    a(f"v_lshrrev_b32 v{t1}, 5, v{L}")
    a(f"v_bfe_u32 v{t2}, v{L}, 2, 2")
    a(f"v_lshlrev_b32 v{t3}, 3, v{t1}")
    a(f"v_add_u32 v{t3}, v{t3}, v{t2}")
    a(f"v_bfe_u32 v{t4}, v{L}, 4, 1")
    a(f"v_lshlrev_b32 v{t4}, 5, v{t4}")
    a(f"v_and_b32 v{t5}, 3, v{L}")
    a(f"v_lshlrev_b32 v{t5}, 3, v{t5}")
    a(f"v_add_u32 v{t4}, v{t4}, v{t5}")
    a(f"v_lshlrev_b32 v{t5}, 7, v{t3}")
    a(f"v_add_u32 v{t5}, v{t5}, v{t4}")
    a(f"v_lshrrev_b32 v{t6}, 1, v{t2}")
    a(f"v_lshlrev_b32 v{t6}, 6, v{t6}")
    a(f"v_add_u32 v{V_TR20}, v{t5}, v{t6}")
    a(f"v_mul_u32_u24 v{t5}, 192, v{t3}")
    a(f"v_add_u32 v{V_TR3}, v{t5}, v{t4}")
    srd(a, 40, 22, 23, ACT_BYTES, WS_ACT)
    srd(a, 44, 22, 23, PQ_BYTES, WS_PQ)
    a(f"s_mov_b32 s97, {fbits(-LOG2E)}"); a(f"s_mov_b32 s98, {fbits(LOG2E)}"); a(f"s_mov_b32 s99, {fbits(1e-6)}")
    a("s_mov_b32 s76, 0xffff"); a("s_mov_b32 s77, 0xffff")
    a("s_lshl_b32 s73, s24, 10")
    a(f"s_add_u32 s73, s73, {FR}")
    a(f"v_add_u32 v{V_FW}, s73, v{V_L16}")

AV_P2G, AV_P2W, AV_P2H = 8, 9, 10
AV_P3 = 11
AV_L16, AV_LANE = 14, 15
AV_RSTD, AV_C1, AV_IRS, AV_C3 = 16, 17, 18, 19
AV_DR = 20
AV_HF, AV_L31 = 23, 24
AV_DR4 = 21
AV_T = 25
ZACC = 29
AV_E = 30
SIG = 32
WD, WT = 64, 96
TD = [64, 80]
MT = 96
PQ = 128; PKF = 128; VF = 152
W2 = 176
RS = 176
OB = 176
SF = 208
CFB = 128

class Aux:
    def __init__(self, a, typ):
        self.a = a; self.typ = typ
        self.vq = Q()
        self.stage_seq = {}; self.dmaq = []; self.want = True; self.dirty = False
        self.passes = passes_for(typ)
        self.P = Plan(typ)
    def col_base(self, X, dst):
        a = self.a; name = self.passes[X][0]
        if name in ("G", "U"):
            src = 32 if name == "G" else 36
            if self.typ == "Q":
                a(f"s_lshl_b32 s{dst}, s26, 8")
                if X >= 3: a(f"s_add_u32 s{dst}, s{dst}, 128")
            else:
                a(f"s_lshl_b32 s{dst}, s26, 7"); a(f"s_add_u32 s{dst}, s{dst}, 2048")
            return src, 3456
        if name == "H":
            a(f"s_lshl_b32 s{dst}, s26, 6"); a(f"s_add_u32 s{dst}, s{dst}, 3072"); return 32, 3456
        off = {"q": 0, "k": 1280, "v": 2560}[name]
        a(f"s_mul_i32 s{dst}, s26, 160")
        if off: a(f"s_add_u32 s{dst}, s{dst}, {off}")
        return 28, 3840
    def queue_stage(self, si):
        a = self.a; st = self.P.st[si]; X = st['X']
        name, T, _ = self.passes[X]
        pitch = {"G": 3456, "U": 3456, "H": 3456}.get(name, 3840)
        rows = st['nt'] * 16; rows_w = rows // 4
        n = 4 if T == 2 else rows_w * 12 // 64
        def head():
            if st['t0'] == 0:
                src, _p = self.col_base(X, 68)
                for i in range(4): a(f"s_mov_b32 s{64+i}, s{src+i}")
            a(f"s_mul_i32 s71, s24, {rows_w*pitch}")
            a("s_add_u32 s71, s71, s68")
            a(f"s_mul_i32 s69, s24, {n*1024}")
            a(f"s_add_u32 s55, s69, {st['pos']}")
            a(f"s_add_u32 s68, s68, {rows*pitch}")
        def mk(i):
            def f():
                if i == 0: head()
                a("s_mov_b32 m0, s55")
                a("s_add_u32 s55, s55, 1024")
                if T == 2:
                    if name == "H":
                        a("s_mov_b64 exec, s[76:77]")
                        a(f"buffer_load_dwordx4 v{AV_P2H}, s[32:35], s71 offen lds")
                        a("s_mov_b64 exec, s[78:79]")
                        a(f"buffer_load_dwordx4 v{AV_P2H}, s[36:39], s71 offen lds")
                        a("s_mov_b64 exec, -1")
                        self.vq.issue(2)
                    else:
                        v = AV_P2W if name == "v" else AV_P2G
                        a(f"buffer_load_dwordx4 v{v}, s[64:67], s71 offen lds")
                        self.vq.issue(1)
                    if i < 3:
                        a(f"s_add_u32 s71, s71, {8*pitch}")
                else:
                    a(f"buffer_load_dwordx4 v{AV_P3 + i%3}, s[64:67], s71 offen lds")
                    self.vq.issue(1)
                    if i == 2 and n > 3: a(f"s_add_u32 s71, s71, {16*pitch}")
                if i == n - 1: self.stage_seq[si] = self.vq.n
            return f
        self.dmaq += [mk(i) for i in range(n)]
    def tick(self): pass
    def flush(self):
        while self.dmaq: self.dmaq.pop(0)()
    def issue_stage(self, si):
        self.queue_stage(si); self.flush()
    def wait_vm(self, seq):
        self.a(f"s_waitcnt vmcnt({min(63, self.vq.left(seq))})")

def lg0(A): A.a("s_waitcnt lgkmcnt(0)")

def aux_setup_early(a, typ):
    L = AV_LANE
    a(f"v_and_b32 v{L}, 63, v0")
    for i in range(3):
        a(f"v_add_u32 v1, {64*i}, v{L}")
        a(f"v_mul_u32_u24 v2, 171, v1")
        a(f"v_lshrrev_b32 v2, 11, v2")
        a(f"v_mul_u32_u24 v3, 12, v2")
        a(f"v_sub_u32 v3, v1, v3")
        a(f"v_lshlrev_b32 v4, 4, v3")
        if typ == "KV":
            a(f"v_add_u32 v5, 1248, v4")
            a(f"v_cmp_le_u32 vcc, 10, v3")
            a(f"v_mul_u32_u24 v6, 3840, v2")
            a("s_nop 0")
            a(f"v_cndmask_b32 v4, v4, v5, vcc")
            a(f"v_add_u32 v{AV_P3+i}, v6, v4")
        else:
            a(f"v_mul_u32_u24 v5, 3840, v2")
            a(f"v_add_u32 v{AV_P3+i}, v5, v4")
def aux_setup(a, typ):
    L = AV_LANE
    a(f"v_lshlrev_b32 v{AV_L16}, 4, v{L}")
    a(f"v_lshrrev_b32 v1, 3, v{L}")
    a(f"v_bfe_u32 v2, v{L}, 2, 1")
    a(f"v_bfe_u32 v3, v{L}, 4, 1")
    a(f"v_xor_b32 v2, v2, v3")
    a(f"v_and_b32 v3, 3, v{L}")
    a(f"v_lshlrev_b32 v3, 4, v3")
    a(f"v_lshlrev_b32 v4, 6, v2")
    a(f"v_add_u32 v4, v4, v3")
    a(f"v_mul_u32_u24 v5, 3456, v1")
    a(f"v_add_u32 v{AV_P2G}, v5, v4")
    a(f"v_add_u32 v{AV_P2H}, v5, v3")
    a(f"v_mul_u32_u24 v5, 3840, v1")
    a(f"v_add_u32 v{AV_P2W}, v5, v4")
    a(f"v_cmp_eq_u32 s[76:77], 0, v2")
    a(f"v_cmp_eq_u32 s[78:79], 1, v2")
    a(f"v_lshrrev_b32 v{AV_HF}, 5, v{L}")
    a(f"v_and_b32 v{AV_L31}, 31, v{L}")
    a("s_lshl_b32 s69, s24, 12")
    a(f"v_add_u32 v{AV_DR}, s69, v{AV_L16}")
    a(f"v_lshlrev_b32 v1, 2, v{L}")
    a(f"v_add_u32 v{AV_DR4}, s69, v1")

def get_epoch(A):
    a = A.a
    lab = a.newlabel("Lep")
    a("s_cmp_lg_u32 s2, 0"); a(f"s_cbranch_scc1 {lab}")
    a("s_cmp_lg_u32 s24, 0"); a(f"s_cbranch_scc1 {lab}")
    a("s_memrealtime s[80:81]")
    a("s_waitcnt lgkmcnt(0)")
    a("s_or_b32 s80, s80, 1")
    a(f"v_mov_b32 v{AV_T+1}, s80"); a(f"v_mov_b32 v{AV_T+2}, s81"); a(f"v_mov_b32 v{AV_T}, 0")
    a("s_mov_b64 exec, 1")
    a(f"buffer_store_dwordx2 {vr(AV_T+1,2)}, v{AV_T}, s[52:55], 0 offen sc1")
    a("s_mov_b64 exec, -1")
    a.label(lab)
def epoch_issue(A):
    a = A.a
    a(f"v_mov_b32 v{AV_T}, 0")
    a(f"buffer_load_dwordx2 {vr(AV_E,2)}, v{AV_T}, s[52:55], 0 offen sc1")
    A.ep_seq = A.vq.issue(1)
def epoch_check(A):
    a = A.a
    A.wait_vm(A.ep_seq)
    l1 = a.newlabel("Lwe"); l2 = a.newlabel("Lec")
    a(f"v_readfirstlane_b32 s81, v{AV_E}")
    a("s_cmp_lg_u32 s81, 0")
    a(f"s_cbranch_scc1 {l2}")
    a(f"v_mov_b32 v{AV_T}, 0")
    a(f"s_mov_b32 s70, {SPIN_MAX}")
    a.label(l1)
    a(f"buffer_load_dwordx2 {vr(AV_E,2)}, v{AV_T}, s[52:55], 0 offen sc1")
    a("s_waitcnt vmcnt(0)")
    a(f"v_readfirstlane_b32 s81, v{AV_E}")
    a("s_cmp_lg_u32 s81, 0")
    a(f"s_cbranch_scc1 {l2}")
    a("s_sleep 1")
    a("s_sub_u32 s70, s70, 1")
    a("s_cmp_lg_u32 s70, 0")
    a(f"s_cbranch_scc1 {l1}")
    a.label(l2)
def _tagcmp(a, tag_regs):
    a("s_mov_b64 s[82:83], exec")
    for lo in tag_regs:
        a(f"v_cmp_eq_u32 vcc, v{lo}, v{AV_E}")
        a("s_and_b64 s[82:83], s[82:83], vcc")
        a(f"v_cmp_eq_u32 vcc, v{lo+1}, v{AV_E+1}")
        a("s_and_b64 s[82:83], s[82:83], vcc")
    a("s_cmp_eq_u64 s[82:83], exec")
def tag_check(A, seq, emit_loads, tag_regs):
    a = A.a
    A.wait_vm(seq)
    done = a.newlabel("Ltc"); l1 = a.newlabel("Ltr")
    _tagcmp(a, tag_regs)
    a(f"s_cbranch_scc1 {done}")
    a(f"s_mov_b32 s70, {SPIN_MAX}")
    a.label(l1)
    a("s_sleep 1")
    emit_loads()
    a("s_waitcnt vmcnt(0)")
    _tagcmp(a, tag_regs)
    a(f"s_cbranch_scc1 {done}")
    a("s_sub_u32 s70, s70, 1")
    a("s_cmp_lg_u32 s70, 0")
    a(f"s_cbranch_scc1 {l1}")
    a.label(done)
def flg_srd(A): srd(A.a, 92, 22, 23, FLG_BYTES, WS_FLG)
def store_flag(A):
    a = A.a
    a(f"v_mov_b32 v{AV_T}, s80")
    a(f"v_mov_b32 v{AV_T+1}, 1")
    a("s_mov_b64 exec, 1")
    a(f"buffer_store_dword v{AV_T+1}, v{AV_T}, s[92:95], 0 offen sc1")
    a("s_mov_b64 exec, -1")

def task_stats_load(A):
    a = A.a
    a("s_lshl_b32 s80, s25, 7")
    a("s_lshl_b32 s81, s19, 3")
    a("s_add_u32 s80, s80, s81")
    a("s_lshl_b32 s81, s24, 1")
    a("s_add_u32 s80, s80, s81")
    a(f"v_add_u32 v{W2}, s80, v{AV_HF}")
    a(f"v_mul_u32_u24 v{W2+1}, 1280, v{W2}")
    a(f"v_lshlrev_b32 v{W2+2}, 4, v{AV_L31}")
    a(f"v_add_u32 v{W2+1}, v{W2+1}, v{W2+2}")
    a(f"v_cmp_gt_u32 vcc, 16, v{AV_L31}")
    a(f"v_mov_b32 v{W2+3}, 0x7f000000")
    a(f"v_lshlrev_b32 v{W2}, 4, v{W2}")
    a(f"v_cndmask_b32 v{W2+2}, v{W2+3}, v{W2+1}, vcc")
    a(f"buffer_load_dwordx4 {vr(W2+4,4)}, v{W2+1}, s[72:75], 0 offen")
    a(f"buffer_load_dwordx4 {vr(W2+8,4)}, v{W2+1}, s[72:75], 0 offen offset:512")
    a(f"buffer_load_dwordx4 {vr(W2+12,4)}, v{W2+2}, s[72:75], 0 offen offset:1024")
    A.st_seq = A.vq.issue(3)
def red32(a, v, t):
    for m in ("quad_perm:[1,0,3,2]", "quad_perm:[2,3,0,1]", "row_half_mirror", "row_mirror"):
        a("s_nop 1")
        a(f"v_add_f32_dpp v{v}, v{v}, v{v} {m} row_mask:0xf bank_mask:0xf")
    a(f"v_mov_b32 v{t}, v{v}")
    a("s_nop 1")
    a(f"v_permlane16_swap_b32 v{v}, v{t}")
    a("s_nop 1")
    a(f"v_add_f32 v{v}, v{v}, v{t}")
def task_stats_compute(A):
    a = A.a
    A.wait_vm(A.st_seq)
    X = W2 + 16
    for i in range(12):
        a(f"v_lshlrev_b32 v{X+2*i}, 16, v{W2+4+i}")
        a(f"v_and_b32 v{X+2*i+1}, 0xffff0000, v{W2+4+i}")
    s0, s1 = W2 + 40, W2 + 41
    a(f"v_add_f32 v{s0}, v{X}, v{X+1}")
    a(f"v_add_f32 v{s1}, v{X+2}, v{X+3}")
    for i in range(4, 24, 2):
        a(f"v_add_f32 v{s0}, v{s0}, v{X+i}")
        a(f"v_add_f32 v{s1}, v{s1}, v{X+i+1}")
    a(f"v_add_f32 v{s0}, v{s0}, v{s1}")
    A.tick()
    red32(a, s0, s1)
    a(f"v_mul_f32 v{s0}, {fbits(1/640)}, v{s0}")
    for i in range(24): a(f"v_sub_f32 v{X+i}, v{X+i}, v{s0}")
    a(f"v_cmp_gt_u32 vcc, 16, v{AV_L31}")
    q0, q1 = W2 + 42, W2 + 43
    a(f"v_mul_f32 v{q0}, v{X}, v{X}")
    a(f"v_mul_f32 v{q1}, v{X+1}, v{X+1}")
    for i in range(16, 24): a(f"v_cndmask_b32 v{X+i}, 0, v{X+i}, vcc")
    for i in range(2, 24, 2):
        a(f"v_fmac_f32 v{q0}, v{X+i}, v{X+i}")
        a(f"v_fmac_f32 v{q1}, v{X+i+1}, v{X+i+1}")
    a(f"v_add_f32 v{q0}, v{q0}, v{q1}")
    A.tick()
    red32(a, q0, q1)
    a(f"v_mul_f32 v{q0}, {fbits(1/640)}, v{q0}")
    a(f"v_add_f32 v{q0}, {fbits(1e-5)}, v{q0}")
    a(f"v_rsq_f32 v{q0}, v{q0}")
    a(f"v_mov_b32 v{q1}, v{s0}")
    a(f"v_mov_b32 v{q0+2}, v{AV_E}")
    a(f"v_mov_b32 v{q0+3}, v{AV_E+1}")
    a(f"v_cmp_eq_u32 vcc, 0, v{AV_L31}")
    a("s_nop 1")
    a("s_and_saveexec_b64 s[82:83], vcc")
    a(f"buffer_store_dwordx4 {vr(q0,4)}, v{W2}, s[84:87], 0 offen sc1")
    a("s_mov_b64 exec, s[82:83]")
    A.vq.issue(1)

def task_cs_load(A):
    a = A.a
    a("s_mul_i32 s80, s2, 0x5556")
    a("s_lshr_b32 s80, s80, 16")
    a("s_mul_i32 s81, s80, 3")
    a("s_sub_u32 s81, s2, s81")
    a("s_mov_b32 s92, s28"); a("s_mov_b32 s93, s29"); a("s_mov_b32 s94, s30"); a("s_mov_b32 s95, 0x00020000")
    a("s_mov_b32 s82, 3840")
    a("s_lshl_b32 s83, s80, 7")
    l1 = a.newlabel("Lcs")
    a("s_cmp_lt_u32 s80, 30")
    a(f"s_cbranch_scc1 {l1}")
    a("s_mov_b32 s92, s32"); a("s_mov_b32 s93, s33"); a("s_mov_b32 s94, s34")
    a("s_mov_b32 s82, 3456")
    a(f"s_sub_u32 s83, s83, {30*128}")
    a("s_cmp_lt_u32 s80, 57")
    a(f"s_cbranch_scc1 {l1}")
    a("s_mov_b32 s92, s36"); a("s_mov_b32 s93, s37"); a("s_mov_b32 s94, s38")
    a(f"s_sub_u32 s83, s83, {27*128}")
    a.label(l1)
    a("s_lshl_b32 s69, s81, 8")
    a("s_lshl_b32 s70, s24, 6")
    a("s_add_u32 s69, s69, s70")
    a(f"v_lshrrev_b32 v{W2+48}, 3, v{AV_LANE}")
    a(f"v_add_u32 v{W2+48}, s69, v{W2+48}")
    a(f"v_mul_lo_u32 v{W2+48}, v{W2+48}, s82")
    a(f"v_and_b32 v{W2+49}, 7, v{AV_LANE}")
    a(f"v_lshlrev_b32 v{W2+49}, 4, v{W2+49}")
    a(f"v_add_u32 v{W2+48}, v{W2+48}, v{W2+49}")
    a("s_lshl_b32 s70, s82, 3")
    a("s_cmp_ge_u32 s2, 252")
    a("s_cselect_b32 s83, 0x7f000000, s83")
    a("s_mul_i32 s96, s81, 5376")
    a("s_lshl_b32 s97, s80, 6")
    a("s_add_u32 s96, s96, s97")
    a("s_lshl_b32 s96, s96, 4")
    a("s_cmp_ge_u32 s2, 252")
    a("s_cselect_b32 s96, 0x7f000000, s96")
    for i in range(8):
        a(f"buffer_load_dwordx4 {vr(PQ+4*i,4)}, v{W2+48}, s[92:95], s83 offen")
        if i < 7: a("s_add_u32 s83, s83, s70")
    A.cs_seq = A.vq.issue(8)
def task_cs_compute(A):
    a = A.a
    A.wait_vm(A.cs_seq)
    acc = WD
    for i in range(8):
        for r in range(4):
            src = PQ + 4 * i + r
            d = acc if i == 0 else WT
            a(f"v_lshlrev_b32 v{d+2*r}, 16, v{src}")
            a(f"v_and_b32 v{d+2*r+1}, 0xffff0000, v{src}")
        if i:
            for e in range(8): a(f"v_add_f32 v{acc+e}, v{acc+e}, v{WT+e}")
        if i % 2: A.tick()
    a("s_nop 1")
    for e in range(8): a(f"v_add_f32_dpp v{acc+e}, v{acc+e}, v{acc+e} row_ror:8 row_mask:0xf bank_mask:0xf")
    for sw in ("v_permlane16_swap_b32", "v_permlane32_swap_b32"):
        for e in range(8): a(f"v_mov_b32 v{WT+e}, v{acc+e}")
        a("s_nop 1")
        for e in range(8): a(f"{sw} v{acc+e}, v{WT+e}")
        a("s_nop 1")
        for e in range(8): a(f"v_add_f32 v{acc+e}, v{acc+e}, v{WT+e}")
    a("s_lshl_b32 s80, s24, 8")
    a(f"v_lshlrev_b32 v{WT}, 5, v{AV_LANE}")
    a(f"v_add_u32 v{WT}, s80, v{WT}")
    a(f"v_add_u32 v{WT}, {ZL}, v{WT}")
    a("s_mov_b64 exec, 0xff")
    a(f"ds_write_b128 v{WT}, {vr(acc,4)}")
    a(f"ds_write_b128 v{WT}, {vr(acc+4,4)} offset:16")
    a("s_mov_b64 exec, -1")
    lg0(A)
def task_cs_store(A):
    a = A.a
    lab = a.newlabel("Lcss")
    a("s_cmp_lg_u32 s24, 0")
    a(f"s_cbranch_scc1 {lab}")
    a(f"v_lshlrev_b32 v{WT}, 2, v{AV_LANE}")
    a(f"v_add_u32 v{WT+1}, {ZL}, v{WT}")
    for w in range(4): a(f"ds_read_b32 v{WD+4+w}, v{WT+1} offset:{w*256}")
    lg0(A)
    a(f"v_add_f32 v{WD}, v{WD+4}, v{WD+5}")
    a(f"v_add_f32 v{WD+1}, v{WD+6}, v{WD+7}")
    a(f"v_add_f32 v{WD}, v{WD}, v{WD+1}")
    a(f"v_mov_b32 v{WD+2}, v{AV_E}")
    a(f"v_mov_b32 v{WD+3}, v{AV_E+1}")
    a(f"buffer_store_dwordx4 {vr(WD,4)}, v{AV_L16}, s[88:91], s96 offen sc1")
    a.label(lab)

def task_stats_fetch1(A):
    a = A.a
    a("s_lshl_b32 s80, s25, 7")
    a("s_lshl_b32 s81, s24, 5")
    a("s_add_u32 s80, s80, s81")
    a(f"v_add_u32 v{SF}, s80, v{AV_L31}")
    a(f"v_lshlrev_b32 v{SF}, 4, v{SF}")
    a(f"buffer_load_dwordx4 {vr(SF+4,4)}, v{SF}, s[84:87], 0 offen sc1")
    A.sf_seq = A.vq.issue(1)
def task_stats_fetch2(A):
    a = A.a; typ = A.typ
    tag_check(A, A.sf_seq, lambda: a(f"buffer_load_dwordx4 {vr(SF+4,4)}, v{SF}, s[84:87], 0 offen sc1"), [SF + 6])
    R_, M_ = SF + 4, SF + 5
    a(f"v_mov_b32 v{AV_RSTD}, v{R_}")
    a(f"v_mul_f32 v{AV_C1}, {fbits(-LOG2E)}, v{R_}")
    a(f"v_mul_f32 v{AV_C3}, {fbits(LOG2E)}, v{R_}")
    a(f"v_rcp_f32 v{AV_IRS}, v{R_}")
    t = SF + 8
    a(f"v_sub_f32 v{t}, 0, v{M_}")
    a(f"v_cvt_pk_bf16_f32 v{t+1}, v{t}, v{t}")
    a(f"v_and_b32 v{t+2}, 0xffff0000, v{t+1}")
    a(f"v_sub_f32 v{t+2}, v{t}, v{t+2}")
    a(f"v_cvt_pk_bf16_f32 v{t+2}, v{t+2}, v{t+2}")
    a(f"v_cmp_eq_u32 vcc, 0, v{AV_HF}")
    a(f"v_mov_b32 v{t+6}, 0"); a(f"v_mov_b32 v{t+7}, 0")
    a(f"v_cndmask_b32 v{t+4}, 0, v{t+1}, vcc")
    a(f"v_cndmask_b32 v{t+5}, 0, v{t+2}, vcc")
    a("s_lshl_b32 s81, s24, 10")
    a(f"s_add_u32 s81, s81, {AUGB[typ] + 4096}")
    a(f"v_add_u32 v{t}, s81, v{AV_L16}")
    a(f"ds_write_b128 v{t}, {vr(t+4,4)}")
    a("s_lshl_b32 s81, s24, 7")
    a(f"v_lshlrev_b32 v{SF}, 2, v{AV_L31}")
    a(f"v_add_u32 v{SF}, s81, v{SF}")
    a(f"v_add_u32 v{SF}, {ST_RSTD}, v{SF}")
    a(f"ds_write_b32 v{SF}, v{AV_RSTD}")
    lg0(A)
def cs_params(A, X):
    a = A.a; name = A.passes[X][0]
    j80 = lambda dst, add: (a(f"s_mul_i32 s{dst}, s26, 80"), a(f"s_add_u32 s{dst}, s{dst}, {add}"))
    if name == "q": j80(80, 0); split = 96; a("s_mov_b32 s81, s80")
    elif name == "k": j80(80, 640); split = 80; j80(81, 1280 + 64 - 80)
    elif name == "v": j80(80, 1280); split = 96; a("s_mov_b32 s81, s80")
    elif name in ("G", "U"):
        b = 1920 if name == "G" else 3648
        if A.typ == "Q":
            a("s_lshl_b32 s80, s26, 7"); a(f"s_add_u32 s80, s80, {b + (64 if X >= 3 else 0)}")
        else:
            a("s_lshl_b32 s80, s26, 6"); a(f"s_add_u32 s80, s80, {b + 1024}")
        split = 96; a("s_mov_b32 s81, s80")
    else:
        a("s_lshl_b32 s80, s26, 5"); a(f"s_add_u32 s81, s80, {3648 + 1536 - 32}"); a(f"s_add_u32 s80, s80, {1920 + 1536}")
        split = 32
    return split
def cs_addr(A, X, rnd, dst):
    a = A.a
    split = cs_params(A, X)
    c = MT
    a(f"v_add_u32 v{c}, {64*rnd}, v{AV_LANE}")
    a(f"v_mov_b32 v{c+1}, s80")
    a(f"v_mov_b32 v{c+2}, s81")
    a(f"v_cmp_gt_u32 vcc, {split}, v{c}")
    a("s_nop 1")
    a(f"v_cndmask_b32 v{c+1}, v{c+2}, v{c+1}, vcc")
    a(f"v_add_u32 v{c+1}, v{c+1}, v{c}")
    a(f"v_cmp_gt_u32 vcc, 5376, v{c+1}")
    a("s_nop 1")
    a(f"v_cndmask_b32 v{c+1}, 0, v{c+1}, vcc")
    a(f"v_lshlrev_b32 v{dst}, 4, v{c+1}")
def cs_loads(A):
    a = A.a
    for r in range(3):
        for th in range(3):
            a(f"s_mov_b32 s69, {th*5376*16}")
            a(f"buffer_load_dwordx4 {vr(CFB+12*r+4*th,4)}, v{164+r}, s[88:91], s69 offen sc1")
def task_cs_fetch1(A):
    a = A.a
    end = a.newlabel("Lcfe")
    for w in range(4):
        lab = a.newlabel("Lcf")
        if w < 3:
            a(f"s_cmp_lg_u32 s24, {w}")
            a(f"s_cbranch_scc1 {lab}")
        cs_addr(A, w, 0, 164); cs_addr(A, w, 1, 165)
        if w < 3:
            a(f"s_branch {end}")
            a.label(lab)
    a.label(end)
    cs_addr(A, 4, 0, 166)
    cs_loads(A)
    A.cf_seq = A.vq.issue(9)
def task_cs_fetch2(A):
    a = A.a; typ = A.typ
    tag_check(A, A.cf_seq, lambda: cs_loads(A), [CFB + 12 * r + 4 * th + 2 for r in range(3) for th in range(3)])
    a(f"s_mul_i32 s80, s24, {AUG_STRIDE}")
    a(f"v_lshlrev_b32 v{MT}, 1, v{AV_LANE}")
    a(f"v_add_u32 v{MT+1}, s80, v{MT}")
    a(f"v_add_u32 v{MT+1}, {AUGB[typ]}, v{MT+1}")
    a(f"v_add_u32 v{MT+2}, {AUGB[typ] + 4*AUG_STRIDE}, v{MT}")
    for r in range(3):
        b = CFB + 12 * r
        a(f"v_add_f32 v{b}, v{b}, v{b+4}")
        a(f"v_add_f32 v{b}, v{b}, v{b+8}")
        a(f"v_cvt_pk_bf16_f32 v{b+1}, v{b}, v{b}")
        a(f"v_and_b32 v{b+2}, 0xffff0000, v{b+1}")
        a(f"v_sub_f32 v{b+2}, v{b}, v{b+2}")
        a(f"v_cvt_pk_bf16_f32 v{b+2}, v{b+2}, v{b+2}")
        ad = MT + 2 if r == 2 else MT + 1
        off = 128 if r == 1 else 0
        if r == 1: a("s_mov_b64 exec, 0xffffffff")
        a(f"ds_write_b16 v{ad}, v{b+1} offset:{off}")
        a(f"ds_write_b16 v{ad}, v{b+2} offset:{off+192}")
        a(f"ds_write_b16 v{ad}, v{b+1} offset:{off+384}")
        a(f"ds_write_b16 v{ad}, v{b+2} offset:{off+576}")
        if r == 1: a("s_mov_b64 exec, -1")
    lg0(A)

def task_zero(A):
    a = A.a
    lab = a.newlabel("Lz")
    a("s_cmp_lg_u32 s25, 0")
    a(f"s_cbranch_scc1 {lab}")
    for i in range(4): a(f"v_mov_b32 v{WT+i}, 0")
    a("s_lshl_b32 s80, s24, 11")
    a(f"buffer_store_dwordx4 {vr(WT,4)}, v{AV_L16}, s[48:51], s80 offen sc1")
    a(f"buffer_store_dwordx4 {vr(WT,4)}, v{AV_L16}, s[48:51], s80 offen offset:1024 sc1")
    a("s_waitcnt vmcnt(0)")
    a("s_lshl_b32 s80, s26, 7")
    a("s_lshl_b32 s81, s24, 4")
    a("s_add_u32 s80, s80, s81")
    a("s_add_u32 s80, s80, 8192")
    store_flag(A)
    a.label(lab)

def task_w2_load(A):
    a = A.a
    a("s_lshl_b32 s80, s24, 8")
    a("s_add_u32 s80, s80, s2")
    a("s_mul_i32 s81, s80, 0x199a")
    a("s_lshr_b32 s81, s81, 16")
    a("s_mul_i32 s82, s81, 10")
    a("s_sub_u32 s82, s80, s82")
    a("s_mul_i32 s97, s81, 40")
    a("s_lshl_b32 s83, s82, 2")
    a("s_add_u32 s97, s97, s83")
    a("s_lshl_b32 s97, s97, 10")
    a("s_cmp_ge_u32 s80, 740")
    a("s_cselect_b32 s97, 0x7f000000, s97")
    a("s_mov_b32 s92, s56"); a("s_mov_b32 s93, s57"); a("s_mov_b32 s94, s58"); a("s_mov_b32 s95, 0x00020000")
    a("s_lshl_b32 s83, s81, 5")
    lab = a.newlabel("Lw2")
    a("s_cmp_lt_u32 s81, 20")
    a(f"s_cbranch_scc1 {lab}")
    a("s_mov_b32 s92, s60"); a("s_mov_b32 s93, s61"); a("s_mov_b32 s94, s62")
    a("s_sub_u32 s83, s83, 640")
    a.label(lab)
    a("s_mul_i32 s83, s83, 1280")
    a("s_lshl_b32 s82, s82, 7")
    a("s_add_u32 s83, s83, s82")
    a("s_cmp_ge_u32 s80, 740")
    a("s_cselect_b32 s83, 0x7f000000, s83")
    a(f"v_lshrrev_b32 v{WT}, 3, v{AV_LANE}")
    a(f"v_mul_u32_u24 v{WT}, 1280, v{WT}")
    a(f"v_and_b32 v{WT+1}, 7, v{AV_LANE}")
    a(f"v_lshlrev_b32 v{WT+1}, 4, v{WT+1}")
    a(f"v_add_u32 v{WT}, v{WT}, v{WT+1}")
    a("s_lshl_b32 s69, s24, 12")
    a(f"s_add_u32 m0, s69, {W2S}")
    for i in range(4):
        a(f"buffer_load_dwordx4 v{WT}, s[92:95], s83 offen lds")
        if i < 3:
            a("s_add_u32 m0, m0, 1024")
            a(f"s_add_u32 s83, s83, {8*1280}")
    A.w2_seq = A.vq.issue(4)
def task_w2_store(A):
    a = A.a
    A.wait_vm(A.w2_seq)
    a(f"v_lshrrev_b32 v{WT}, 5, v{AV_LANE}")
    a(f"v_lshlrev_b32 v{WT}, 4, v{WT}")
    a(f"v_bfe_u32 v{WT+1}, v{AV_LANE}, 4, 1")
    a(f"v_lshlrev_b32 v{WT+1}, 2, v{WT+1}")
    a(f"v_add_u32 v{WT}, v{WT}, v{WT+1}")
    a(f"v_bfe_u32 v{WT+1}, v{AV_LANE}, 2, 2")
    a(f"v_add_u32 v{WT}, v{WT}, v{WT+1}")
    a(f"v_lshlrev_b32 v{WT}, 7, v{WT}")
    a(f"v_and_b32 v{WT+1}, 3, v{AV_LANE}")
    a(f"v_lshlrev_b32 v{WT+1}, 3, v{WT+1}")
    a(f"v_add_u32 v{WT}, v{WT}, v{WT+1}")
    a("s_lshl_b32 s69, s24, 12")
    a(f"s_add_u32 s69, s69, {W2S}")
    a(f"v_add_u32 v{WT}, s69, v{WT}")
    for nt in range(4):
        a(f"ds_read_b64_tr_b16 {vr(WD+4*nt,2)}, v{WT} offset:{nt*32}")
        a(f"ds_read_b64_tr_b16 {vr(WD+4*nt+2,2)}, v{WT} offset:{nt*32+1024}")
    lg0(A)
    for nt in range(4):
        a(f"buffer_store_dwordx4 {vr(WD+4*nt,4)}, v{AV_L16}, s[44:47], s97 offen offset:{nt*1024}")
    A.vq.issue(4)

def act_base(A, blk_expr_code):
    a = A.a
    def f():
        blk_expr_code()
        a("s_lshl_b32 s81, s25, 2")
        a("s_add_u32 s81, s81, s24")
        a(f"s_mul_i32 s81, s81, {NBLK}")
        a("s_add_u32 s81, s81, s82")
        a("s_lshl_b32 s81, s81, 10")
    return f
TDB = 64
WR = 112
def call(a, sub, idx):
    if OPT.get("nosub"): return
    a(f"s_mov_b32 s70, {idx}")
    a(f"s_swappc_b64 s[62:63], s[{sub}:{sub+1}]")
SUB_SIG, SUB_H, SUB_PHI = 56, 58, 60
def gen_subs(a, name):
    a.label(f"{name}_sub_sig")
    a("s_set_gpr_idx_on s70, gpr_idx(SRC0,SRC1,DST)")
    for i in range(8): a(f"v_mul_f32 v{SIG+i}, s97, v{TDB+i}")
    for i in range(8): a(f"v_exp_f32 v{SIG+i}, v{SIG+i}")
    for i in range(8): a(f"v_add_f32 v{SIG+i}, 1.0, v{SIG+i}")
    for i in range(8): a(f"v_rcp_f32 v{SIG+i}, v{SIG+i}")
    a("s_set_gpr_idx_off")
    a("s_setpc_b64 s[62:63]")
    a.label(f"{name}_sub_h")
    a("s_set_gpr_idx_on s70, gpr_idx(SRC0,SRC1,DST)")
    for i in range(8): a(f"v_mul_f32 v{TDB+i}, v{TDB+i}, v{SIG+i}")
    a("s_set_gpr_idx_mode gpr_idx(SRC0,SRC1)")
    for i in range(4): a(f"v_cvt_pk_bf16_f32 v{MT+i}, v{TDB+2*i}, v{TDB+2*i+1}")
    a("s_set_gpr_idx_off")
    a(f"buffer_store_dwordx4 {vr(MT,4)}, v{AV_L16}, s[40:43], s81 offen {STORE_FLAGS}")
    a("s_setpc_b64 s[62:63]")
    a.label(f"{name}_sub_phi")
    a("s_set_gpr_idx_on s70, gpr_idx(SRC1)")
    for i in range(8): a(f"v_mul_f32 v{MT+i}, s98, v{TDB+i}")
    a("s_set_gpr_idx_off")
    for i in range(8): a(f"v_exp_f32_e64 v{MT+i}, v{MT+i} clamp")
    for i in range(8): a(f"v_add_f32 v{MT+i}, s99, v{MT+i}")
    a("s_set_gpr_idx_on s70, gpr_idx(SRC1)")
    for i in range(8): a(f"v_add_f32 v{WR+i}, v{MT+i}, v{TDB+i}")
    a("s_set_gpr_idx_off")
    for i in range(8): a(f"v_max_f32 v{WR+i}, v{WR+i}, v{MT+i}")
    a("s_setpc_b64 s[62:63]")
def gen_sub_cphi(a, name):
    T, R, Pk = 192, 200, 208
    a.label(f"{name}_sub_cphi")
    a("s_set_gpr_idx_on s70, gpr_idx(SRC1)")
    for i in range(8): a(f"v_mul_f32 v{T+i}, s98, v{SA+i}")
    a("s_set_gpr_idx_off")
    for i in range(8): a(f"v_exp_f32_e64 v{T+i}, v{T+i} clamp")
    for i in range(8): a(f"v_add_f32 v{T+i}, s99, v{T+i}")
    a("s_set_gpr_idx_on s70, gpr_idx(SRC1)")
    for i in range(8): a(f"v_add_f32 v{R+i}, v{T+i}, v{SA+i}")
    a("s_set_gpr_idx_off")
    for i in range(8): a(f"v_max_f32 v{R+i}, v{R+i}, v{T+i}")
    a("s_set_gpr_idx_on s70, gpr_idx(SRC0)")
    for i in range(8): a(f"v_cndmask_b32 v{R+i}, v{SA+i}, v{R+i}, s[72:73]")
    a("s_set_gpr_idx_off")
    for i in range(4): a(f"v_cvt_pk_bf16_f32 v{Pk+i}, v{R+2*i}, v{R+2*i+1}")
    a(f"v_add_u32 v214, s74, v{V_DW}")
    a(f"v_add_f32 v{T}, v{R}, v{R+1}"); a(f"v_add_f32 v{T+1}, v{R+2}, v{R+3}")
    a(f"v_add_f32 v{T+2}, v{R+4}, v{R+5}"); a(f"v_add_f32 v{T+3}, v{R+6}, v{R+7}")
    a(f"ds_write_b128 v214, {vr(Pk,4)}")
    a(f"v_add_f32 v{T}, v{T}, v{T+1}"); a(f"v_add_f32 v{T+2}, v{T+2}, v{T+3}")
    a(f"v_add_f32 v212, v{T}, v{T+2}")
    a("s_setpc_b64 s[62:63]")
def subs_addr(a, name):
    a("s_getpc_b64 s[62:63]")
    lab = a.newlabel("Lpc"); a.label(lab)
    for sub, nm in ((SUB_SIG, "sig"), (SUB_H, "h"), (SUB_PHI, "phi")):
        a(f"s_add_u32 s{sub}, s62, {name}_sub_{nm}-{lab}")
        a(f"s_addc_u32 s{sub+1}, s63, 0")

def need(A):
    if A.want: lg0(A); A.dirty = False
def mo_read(A, buf, tau, nq=4, wide=False):
    a = A.a; d = TDB + 16 * tau
    A.dirty = True
    if OPT.get("nord"): return
    if wide:
        a(f"v_add_u32 v{AV_T}, {buf}, v{AV_DR}")
        for q in range(nq): a(f"ds_read_b128 {vr(d+4*q,4)}, v{AV_T} offset:{q*1024}")
        return
    a(f"v_add_u32 v{AV_T}, {buf}, v{AV_DR4}")
    for r in range(4 * nq): a(f"ds_read_b32 v{d+r}, v{AV_T} offset:{r*256}")
def mo_sig(A, hh):
    need(A); call(A.a, SUB_SIG, 8 * hh)
def mo_h(A, hh, sigidx_same, blk_code, blk):
    a = A.a; need(A)
    blk_code()
    if blk * 1024: a(f"s_add_u32 s81, s81, {blk*1024}")
    call(a, SUB_H, 8 * hh)
    A.vq.issue(1)
def mo_phi(A, hh, dst):
    a = A.a; need(A)
    call(a, SUB_PHI, 8 * hh)
    for i in range(4): a(f"v_cvt_pk_bf16_f32 v{dst+i}, v{WR+2*i}, v{WR+2*i+1}")
def mo_kv(A, hh, h, kind, dstf, tau):
    a = A.a; lg0(A)
    b = TDB + 8 * hh
    if kind == "v":
        for i in range(4): a(f"v_cvt_pk_bf16_f32 v{dstf+4*h+i}, v{b+2*i}, v{b+2*i+1}")
        return
    call(a, SUB_PHI, 8 * hh)
    if kind == "kv":
        a(f"v_cmp_gt_u32 vcc, 16, v{AV_L31}")
        a("s_nop 1")
        for k in range(8): a(f"v_cndmask_b32 v{WR+k}, v{b+k}, v{WR+k}, vcc")
    for i in range(4): a(f"v_cvt_pk_bf16_f32 v{dstf+4*h+i}, v{WR+2*i}, v{WR+2*i+1}")
    w = WR
    a(f"v_add_f32 v{MT}, v{w}, v{w+1}"); a(f"v_add_f32 v{MT+1}, v{w+2}, v{w+3}")
    a(f"v_add_f32 v{MT+2}, v{w+4}, v{w+5}"); a(f"v_add_f32 v{MT+3}, v{w+6}, v{w+7}")
    a(f"v_add_f32 v{MT}, v{MT}, v{MT+1}"); a(f"v_add_f32 v{MT+2}, v{MT+2}, v{MT+3}")
    if h == 0: a(f"v_add_f32 v{ZACC}, v{MT}, v{MT+2}")
    else:
        a(f"v_add_f32 v{MT}, v{MT}, v{MT+2}")
        a(f"v_add_f32 v{MT}, v{MT}, v{ZACC}")
        a(f"v_mov_b32 v{MT+1}, v{MT}")
        a("s_nop 1")
        a(f"v_permlane32_swap_b32 v{MT}, v{MT+1}")
        a(f"s_lshl_b32 s80, s24, {8 if tau < 2 else 6}")
        a(f"v_lshlrev_b32 v{AV_T}, 2, v{AV_L31}")
        a(f"v_add_f32 v{MT}, v{MT}, v{MT+1}")
        a(f"v_add_u32 v{AV_T}, s80, v{AV_T}")
        a(f"v_add_u32 v{AV_T}, {ZL + 128*tau if tau < 2 else KVT_P + 6720}, v{AV_T}")
        if tau == 2: a("s_mov_b64 exec, 0xffff")
        a(f"ds_write_b32 v{AV_T}, v{MT}")
        if tau == 2: a("s_mov_b64 exec, -1")

def kv_zflag1(A):
    a = A.a
    a("s_lshl_b32 s80, s26, 7"); a("s_add_u32 s80, s80, 8192")
    a(f"v_add_u32 v6, s80, v{AV_L16}")
    a("s_mov_b64 exec, 15")
    a(f"buffer_load_dwordx2 v[4:5], v6, s[92:95], 0 offen sc1")
    a("s_mov_b64 exec, -1")
    A.zf_seq = A.vq.issue(1)
def kv_write_frags(A):
    a = A.a
    a("s_lshl_b32 s80, s24, 10")
    a(f"v_add_u32 v{AV_T}, s80, v{AV_L16}")
    a(f"v_add_u32 v{AV_T+1}, {FRB}, v{AV_T}")
    for tile in range(5):
        for blk in range(2):
            src = (PKF + 8 * tile if tile < 3 else VF + 8 * (tile - 3)) + 4 * blk
            idx = (tile * 2 + blk) * 4
            if idx < 16: a(f"ds_write_b128 v{AV_T}, {vr(src,4)} offset:{FRA + idx*1024}")
            else: a(f"ds_write_b128 v{AV_T+1}, {vr(src,4)} offset:{(idx-16)*1024}")
    lg0(A)
PRODS = [[(0, 3), (1, 2)], [(0, 4), (2, 4)], [(1, 3), (2, 2)], [(1, 4)]]
PR4 = [[(0, 3), (1, 2)], [(0, 4), (2, 4)], [(1, 3), (2, 2)], [(1, 4), (1, 4)]]
def mreg(pi, q): return (84 if pi == 0 else 56) + 2 * q
def kv_addr(A):
    a = A.a
    end = a.newlabel("Lkae")
    for w in range(4):
        lab = a.newlabel("Lka")
        if w < 3:
            a(f"s_cmp_lg_u32 s24, {w}")
            a(f"s_cbranch_scc1 {lab}")
        (d0, e0), (d1, e1) = PR4[w]
        a(f"s_mov_b32 s4, {d0}"); a(f"s_mov_b32 s5, {e0}"); a(f"s_mov_b32 s6, {d1}"); a(f"s_mov_b32 s7, {e1}")
        a(f"s_mov_b32 s8, {20 if w < 3 else 0}")
        if w < 3:
            a(f"s_branch {end}")
            a.label(lab)
    a.label(end)
    for pi in range(2):
        sd, se = 4 + 2 * pi, 5 + 2 * pi
        eg, he, dd, ad, tm, fd, fe = [192 + 8 * pi + i for i in range(7)]
        a(f"s_sub_u32 s80, s{se}, 3"); a("s_lshl_b32 s80, s80, 5")
        a(f"s_cmp_eq_u32 s{se}, 2"); a("s_cselect_b32 s80, 48, s80")
        a(f"v_add_u32 v{eg}, s80, v{AV_L31}")
        a(f"v_mul_u32_u24 v{he}, 205, v{eg}")
        a(f"v_lshrrev_b32 v{he}, 12, v{he}")
        a(f"v_mul_u32_u24 v{tm}, 20, v{he}")
        a(f"s_lshl_b32 s81, s{sd}, 5")
        a(f"v_lshlrev_b32 v{dd}, 2, v{AV_HF}")
        a(f"v_add_u32 v{dd}, s81, v{dd}")
        a(f"v_sub_u32 v{dd}, v{dd}, v{tm}")
        a(f"v_mul_u32_u24 v{ad}, 80, v{eg}")
        a(f"v_lshlrev_b32 v{tm}, 2, v{dd}")
        a(f"v_add_u32 v{ad}, v{ad}, v{tm}")
        a(f"v_add_u32 v{ad}, {KVT_P}, v{ad}")
        a(f"s_cmp_eq_u32 s{se}, 2"); a("s_cselect_b32 s82, 16, 0")
        a(f"v_cmp_gt_u32 vcc, s82, v{AV_L31}")
        a(f"v_mov_b32 v{tm}, 0x1000")
        a(f"s_lshl_b32 s81, s{sd}, 13"); a(f"s_add_u32 s81, s81, {FR}")
        a(f"v_cndmask_b32 v{dd}, v{dd}, v{tm}, vcc")
        a(f"v_add_u32 v{fd}, s81, v{AV_L16}")
        a(f"s_lshl_b32 s81, s{se}, 13"); a(f"s_add_u32 s81, s81, {FR}")
        a(f"v_add_u32 v{fe}, s81, v{AV_L16}")
        lim = "20" if pi == 0 else "s8"
        for q in range(4):
            a(f"v_add_u32 v{tm}, {8*q}, v{dd}")
            a(f"v_cmp_gt_u32 s[{mreg(pi,q)}:{mreg(pi,q)+1}], {lim}, v{tm}")
def kv_prod(A, pi):
    a = A.a
    fd, fe = 192 + 8 * pi + 5, 192 + 8 * pi + 6
    Dr = 208 + 16 * pi
    steps = [(sw, blk) for sw in range(4) for blk in range(2)]
    for k, (sw, blk) in enumerate(steps):
        a(f"ds_read_b128 {vr(64+8*k,4)}, v{fd} offset:{blk*4096+sw*1024}")
        a(f"ds_read_b128 {vr(68+8*k,4)}, v{fe} offset:{blk*4096+sw*1024}")
    for k in range(8):
        a(f"s_waitcnt lgkmcnt({14 - 2*k})")
        c = "0" if k == 0 else vr(Dr, 16)
        a(f"v_mfma_f32_32x32x16_bf16 {vr(Dr,16)}, {vr(64+8*k,4)}, {vr(68+8*k,4)}, {c}")
def kv_scatter(A):
    a = A.a
    lab = a.newlabel("Lkz")
    a("s_cmp_lg_u32 s24, 3"); a(f"s_cbranch_scc1 {lab}")
    a(f"v_lshlrev_b32 v184, 2, v{AV_LANE}")
    a(f"v_add_u32 v185, {ZL}, v184")
    a(f"v_add_u32 v186, {KVT_P + 6720}, v184")
    for ww in range(4): a(f"ds_read_b32 v{187+ww}, v185 offset:{ww*256}")
    for ww in range(4): a(f"ds_read_b32 v{176+ww}, v186 offset:{ww*64}")
    lg0(A)
    a(f"v_add_f32 v187, v187, v188"); a(f"v_add_f32 v189, v189, v190"); a(f"v_add_f32 v187, v187, v189")
    a(f"v_add_f32 v176, v176, v177"); a(f"v_add_f32 v178, v178, v179"); a(f"v_add_f32 v176, v176, v178")
    a(f"v_add_u32 v185, {KVT_P + 6400}, v184")
    a(f"ds_write_b32 v185, v187")
    a("s_mov_b64 exec, 0xffff")
    a(f"ds_write_b32 v185, v176 offset:256")
    a("s_mov_b64 exec, -1")
    a.label(lab)
    a("s_nop 7"); a("s_nop 7")
    for pi in range(2):
        Dr = 208 + 16 * pi; ad = 192 + 8 * pi + 3
        for q in range(4):
            a(f"s_mov_b64 exec, s[{mreg(pi,q)}:{mreg(pi,q)+1}]")
            a(f"ds_write_b128 v{ad}, {vr(Dr+4*q,4)} offset:{32*q}")
        a("s_mov_b64 exec, -1")
    lg0(A)
def kv_atomics(A):
    a = A.a
    a("s_lshl_b32 s80, s24, 8")
    a(f"v_lshlrev_b32 v{AV_T}, 2, v{AV_LANE}")
    a(f"v_add_u32 v{AV_T}, s80, v{AV_T}")
    a(f"v_add_u32 v{AV_T+1}, {KVT_P}, v{AV_T}")
    for m in range(7): a(f"ds_read_b32 v{128+m}, v{AV_T+1} offset:{m*1024}")
    lg0(A)
    a("s_and_b32 s80, s25, 3")
    a("s_lshl_b32 s80, s80, 13")
    for m in range(7):
        a(f"buffer_atomic_add_f32 v{128+m}, v{AV_T}, s[48:51], s80 offen")
        if m < 6: a("s_add_u32 s80, s80, 1024")
    A.kv_at = A.vq.issue(7)

def o_poll(A):
    a = A.a
    done = a.newlabel("Lfd"); l1 = a.newlabel("Lfr")
    a("s_cmp_lg_u32 s24, 0")
    a(f"s_cbranch_scc1 {done}")
    a("s_lshl_b32 s80, s26, 11")
    a(f"v_lshlrev_b32 v{OB}, 7, v{AV_LANE}")
    a(f"v_add_u32 v{OB}, s80, v{OB}")
    a("s_mov_b64 exec, 0xffff")
    a(f"s_mov_b32 s70, {SPIN_MAX}")
    a.label(l1)
    a(f"buffer_load_dword v{OB+2}, v{OB}, s[92:95], 0 offen sc1")
    a("s_waitcnt vmcnt(0)")
    a(f"v_cmp_ne_u32 vcc, 0, v{OB+2}")
    a("s_cmp_eq_u64 vcc, exec")
    l2 = a.newlabel("Lfe")
    a(f"s_cbranch_scc1 {l2}")
    a("s_sleep 1")
    a("s_sub_u32 s70, s70, 1")
    a("s_cmp_lg_u32 s70, 0")
    a(f"s_cbranch_scc1 {l1}")
    a.label(l2)
    a("s_mov_b64 exec, -1")
    a.label(done)
def o_fetch1(A):
    a = A.a
    a("s_mul_i32 s80, s24, 1792")
    a(f"v_add_u32 v{OB}, s80, v{AV_L16}")
    for r in range(4):
        a(f"s_mov_b32 s81, {r*8192}")
        a(f"buffer_load_dwordx4 {vr(OB+4+8*r,4)}, v{OB}, s[48:51], s81 offen sc1")
        a(f"buffer_load_dwordx4 {vr(OB+8+8*r,4)}, v{OB}, s[48:51], s81 offen offset:1024 sc1")
    A.of2_seq = A.vq.issue(8)
def o_fetch2(A):
    a = A.a
    A.wait_vm(A.of2_seq)
    for e in range(8):
        a(f"v_add_f32 v{OB+4+e}, v{OB+4+e}, v{OB+12+e}")
        a(f"v_add_f32 v{OB+20+e}, v{OB+20+e}, v{OB+28+e}")
    for e in range(8): a(f"v_add_f32 v{OB+4+e}, v{OB+4+e}, v{OB+20+e}")
    a(f"v_add_u32 v{OB}, {KVC}, v{OB}")
    a(f"ds_write_b128 v{OB}, {vr(OB+4,4)}")
    a(f"s_mov_b32 s80, -1"); a("s_mov_b32 s81, 0xffff")
    a("s_mov_b64 exec, s[80:81]")
    a(f"ds_write_b128 v{OB}, {vr(OB+8,4)} offset:1024")
    a("s_mov_b64 exec, -1")
    lg0(A)
OFR4 = [(0, 0), (0, 1), (0, 2), (1, 1), (1, 2), (1, 3), (1, 4), (2, 0), (2, 1), (2, 2), (2, 3), (2, 4)]
def o_build4(A, rnd):
    a = A.a
    end = a.newlabel("Lobe")
    eg, he, dd, ad, tm, t2 = [OB + 16 + k for k in range(6)]
    V, PK = OB, OB + 8
    for w in range(4):
        i = 4 * rnd + w
        et, db = OFR4[i]
        lab = a.newlabel("Lob")
        if w < 3:
            a(f"s_cmp_lg_u32 s24, {w}")
            a(f"s_cbranch_scc1 {lab}")
        a(f"s_mov_b32 s80, {32*et}"); a(f"s_mov_b32 s81, {16*db}"); a(f"s_mov_b32 s82, {KVF + i*1024}")
        a(f"s_mov_b32 s83, {32 if et < 2 else 20}")
        if w < 3:
            a(f"s_branch {end}")
            a.label(lab)
    a.label(end)
    a(f"v_add_u32 v{eg}, s80, v{AV_L31}")
    a(f"v_mul_u32_u24 v{he}, 205, v{eg}")
    a(f"v_lshrrev_b32 v{he}, 12, v{he}")
    a(f"v_subrev_u32 v{tm}, 80, v{eg}")
    a(f"v_cmp_le_u32 vcc, 80, v{eg}")
    a(f"v_lshlrev_b32 v{dd}, 2, v{AV_HF}")
    a(f"v_add_u32 v{dd}, s81, v{dd}")
    a(f"v_cndmask_b32 v{he}, v{he}, v{tm}, vcc")
    a(f"v_mul_u32_u24 v{tm}, 20, v{he}")
    a(f"v_sub_u32 v{dd}, v{dd}, v{tm}")
    a(f"v_cmp_gt_u32 vcc, s83, v{AV_L31}")
    a(f"v_mov_b32 v{tm}, 0x1000")
    a(f"v_mul_u32_u24 v{ad}, 80, v{eg}")
    a(f"v_cndmask_b32 v{dd}, v{tm}, v{dd}, vcc")
    a(f"v_add_u32 v{t2}, 8, v{dd}")
    a(f"v_cmp_gt_u32 s[72:73], 20, v{dd}")
    a(f"v_cmp_gt_u32 s[74:75], 20, v{t2}")
    a(f"v_add_u32 v{ad}, {KVC}, v{ad}")
    a("s_nop 0")
    a(f"v_cndmask_b32 v{dd}, 0, v{dd}, s[72:73]")
    a(f"v_cndmask_b32 v{t2}, 0, v{t2}, s[74:75]")
    a(f"v_lshl_add_u32 v{dd}, v{dd}, 2, v{ad}")
    a(f"v_lshl_add_u32 v{t2}, v{t2}, 2, v{ad}")
    a(f"ds_read_b128 {vr(V,4)}, v{dd}")
    a(f"ds_read_b128 {vr(V+4,4)}, v{t2}")
    a(f"v_add_u32 v{tm}, s82, v{AV_L16}")
    lg0(A)
    for p in range(4): a(f"v_cvt_pk_bf16_f32 v{PK+p}, v{V+2*p}, v{V+2*p+1}")
    for p in range(2): a(f"v_cndmask_b32 v{PK+p}, 0, v{PK+p}, s[72:73]")
    for p in range(2): a(f"v_cndmask_b32 v{PK+2+p}, 0, v{PK+2+p}, s[74:75]")
    a(f"ds_write_b128 v{tm}, {vr(PK,4)}")
RD = 248
def o_mfma(A, et):
    a = A.a
    N, FRG = OB, OB + 32
    idxs = [i for i, (e, db) in enumerate(OFR4) if e == et]
    a(f"v_add_u32 v{AV_T}, {KVF}, v{AV_L16}")
    for k, i in enumerate(idxs): a(f"ds_read_b128 {vr(FRG+4*k,4)}, v{AV_T} offset:{i*1024}")
    A.tick()
    for k, i in enumerate(idxs):
        a(f"s_waitcnt lgkmcnt({len(idxs)-1-k})")
        c = "0" if k == 0 else vr(N, 16)
        a(f"v_mfma_f32_32x32x16_bf16 {vr(N,16)}, {vr(FRG+4*k,4)}, {vr(PQ+4*OFR4[i][1],4)}, {c}")
    A.tick()
    a("s_nop 7"); a("s_nop 7")
def o_rd(et, q):
    e0 = 32 * et + 8 * q
    if e0 == 16: return RD + 4
    if e0 == 56: return RD + 5
    return RD + e0 // 20
def o_scale_store(A, et):
    a = A.a
    N = OB; PKD = OB + 24
    nq = 4 if et < 2 else 2
    for q in range(nq):
        for e in range(4): a(f"v_mul_f32 v{N+4*q+e}, v{N+4*q+e}, v{o_rd(et, q)}")
    for i in range(2 * nq): a(f"v_cvt_pk_bf16_f32 v{PKD+i}, v{N+2*i}, v{N+2*i+1}")
    act_base(A, lambda: a("s_mul_i32 s82, s26, 5"))()
    if et == 2: a("s_add_u32 s81, s81, 4096")
    a(f"buffer_store_dwordx4 {vr(PKD,4)}, v{AV_L16}, s[40:43], s81 offen offset:{(2*et*1024) % 4096} {STORE_FLAGS}")
    A.vq.issue(1)
    if et < 2:
        a(f"buffer_store_dwordx4 {vr(PKD+4,4)}, v{AV_L16}, s[40:43], s81 offen offset:{(2*et+1)*1024} {STORE_FLAGS}")
        A.vq.issue(1)
    a("s_nop 1")
def o_comp_den(A):
    a = A.a
    o_mfma(A, 2)
    N = OB
    for h in range(4): a(f"v_mov_b32 v{RD+h}, v{N+8+h}")
    for h in range(4): a(f"v_mov_b32 v{OB+16+h}, v{N+8+h}")
    a("s_nop 1")
    for h in range(4): a(f"v_permlane32_swap_b32 v{RD+h}, v{OB+16+h}")
    a("s_nop 1")
    for h in range(4): a(f"v_add_f32 v{RD+h}, s99, v{RD+h}")
    for h in range(4): a(f"v_rcp_f32 v{RD+h}, v{RD+h}")
    a(f"v_cmp_eq_u32 vcc, 1, v{AV_HF}")
    a("s_nop 1")
    a(f"v_cndmask_b32 v{RD+4}, v{RD}, v{RD+1}, vcc")
    a(f"v_cndmask_b32 v{RD+5}, v{RD+2}, v{RD+3}, vcc")
    o_scale_store(A, 2)
def o_comp(A, et):
    o_mfma(A, et); o_scale_store(A, et)

COST = dict(valu=6, trans=11, ds=10, dsw=40, vm=35, salu=3)
def instr_cost(line):
    s = line.strip()
    if not s or s.endswith(":") or s.startswith(";"): return 0
    op = s.split()[0]
    if op.startswith("v_mfma"): return 25
    if op.startswith("v_exp") or op.startswith("v_rcp") or op.startswith("v_rsq"): return COST['trans']
    if op.startswith("v_"): return COST['valu']
    if op.startswith("ds_write") or op.startswith("ds_add"): return COST['dsw']
    if op.startswith("ds_"): return COST['ds']
    if op.startswith("buffer_"): return COST['vm']
    if op == "s_swappc_b64":
        return {"56": 290, "58": 130, "60": 300}[s.split("s[")[2].split(":")[0]]
    if op == "s_waitcnt": return 60 if "lgkmcnt(0)" in s else 10
    if op == "s_nop": return 4 * (int(s.split()[1]) + 1)
    return COST['salu']
def seg_stamp(a, k):
    if OPT.get("segstamp") and k < 64:
        a("s_memtime s[100:101]")
        a("s_waitcnt lgkmcnt(0)")
        a(f"v_writelane_b32 v7, s100, {k}")
class Prog:
    def __init__(self, A, cap, lead):
        self.A = A; self.a = A.a; self.P = A.P; self.NS = A.P.ns
        self.k = 0; self.mark = len(self.a.L); self.used = 0
        self.cap = cap; self.lead = lead; self.nxt = 0
        self.log = {}; self.pend_rd = []; self.hold = False; self.kend = 0
        A.tick = self.tick
    def elapsed(self):
        for l in self.a.L[self.mark:]: self.used += instr_cost(l)
        self.mark = len(self.a.L)
        return self.used
    def queue(self):
        k = self.k
        while self.nxt <= min(k + self.lead(k), self.NS - 1) and self.P.st[self.nxt]['earliest'] <= k:
            self.A.queue_stage(self.nxt); self.nxt += 1
    def close(self):
        A = self.A; k = self.k
        A.flush()
        if k < self.NS: A.wait_vm(A.stage_seq[k])
        if k < 31: seg_stamp(self.a, k)
        self.a("s_barrier")
        if k < 31: seg_stamp(self.a, 32 + k)
        self.log.setdefault(k, []).append(f"[{self.elapsed()}]")
        self.k += 1; self.used = 0; self.mark = len(self.a.L)
        self.queue()
        self.try_reads()
    def try_reads(self):
        while self.pend_rd and self.pend_rd[0][0] <= self.k:
            lo, hi, name, fn = self.pend_rd.pop(0)
            assert self.k <= hi, (name, self.k, lo, hi)
            self.log.setdefault(self.k, []).append(name)
            fn()
    def tick(self):
        self.try_reads()
        if self.A.dmaq: self.A.dmaq.pop(0)()
        if self.k < self.NS and self.elapsed() >= self.cap(self.k) and not self.hold: self.close()
    def run(self, name, fn, lo=0, hi=99):
        while self.k < lo: self.close()
        assert self.k <= hi, (name, self.k, lo, hi)
        self.log.setdefault(self.k, []).append(name)
        fn()
        self.kend = self.k
        kend = self.k
        self.tick()
        return kend

def pq_load(A):
    a = A.a
    a("s_lshl_b32 s81, s25, 2"); a("s_add_u32 s81, s81, s24"); a("s_lshl_b32 s81, s81, 3"); a("s_add_u32 s81, s81, s26"); a("s_mul_i32 s81, s81, 5120")
    for b in range(4): a(f"buffer_load_dwordx4 {vr(PQ+4*b,4)}, v{AV_L16}, s[44:47], s81 offen offset:{b*1024}")
    a("s_add_u32 s81, s81, 4096")
    a(f"buffer_load_dwordx4 {vr(PQ+16,4)}, v{AV_L16}, s[44:47], s81 offen")
    A.pq_seq = A.vq.issue(5)

def gen_aux(a, typ):
    A = Aux(a, typ); P = A.P; NS = P.ns
    if OPT.get("segstamp"): a("v_writelane_b32 v7, s100, 63")
    cap = lambda k: OPT.get('capx', 700)
    LEAD0 = OPT.get("lead0", 2)
    R = Prog(A, cap, lambda k: LEAD0 if k < 5 else OPT.get("lead1", 4))
    seg_stamp(a, 61)
    NI0 = OPT.get("ni0", 2)
    for s_ in range(NI0): A.issue_stage(s_)
    seg_stamp(a, 62)
    R.nxt = NI0
    srd(a, 32, 12, 13, D * F * 2)
    srd(a, 36, 14, 15, D * F * 2)
    srd(a, 40, 22, 23, ACT_BYTES, WS_ACT)
    srd(a, 44, 22, 23, PQ_BYTES, WS_PQ)
    a("s_lshl_b32 s69, s26, 15")
    a(f"s_add_u32 s69, s69, {WS_KV}")
    a("s_add_u32 s48, s22, s69"); a("s_addc_u32 s49, s23, 0"); a(f"s_mov_b32 s50, {KV_STRIDE*KV_REP}"); a("s_mov_b32 s51, 0x00020000")
    aux_setup(a, typ)
    flg_srd(A)
    a(f"s_mov_b32 s99, {fbits(1e-6)}")
    seg_stamp(a, 60)
    R.close()
    run = R.run
    if typ == "Q":
        O0 = OPT.get("o0", 20)
        run("pql", lambda: pq_load(A), lo=P.seg_after(P.endp[1] + 8))
        kk = run("opl", lambda: o_poll(A), lo=O0)
        kk = run("of1", lambda: o_fetch1(A), lo=kk + 1)
        kk = run("of2", lambda: o_fetch2(A), lo=kk + 1)
        for r in range(3): kk = run(f"ob{r}", lambda: o_build4(A, r), lo=kk + (1 if r == 0 else 0))
        lg0(A)
        run("ocd", lambda: (A.wait_vm(A.pq_seq), o_comp_den(A)), lo=kk + 1)
        run("oc0", lambda: o_comp(A, 0))
        run("oc1", lambda: o_comp(A, 1))
    else:
        while R.k <= 10: R.close()
        R.hold = True
        run("kvadr", lambda: kv_addr(A))
        R.hold = False
        a("s_barrier")
        run("kvp0", lambda: kv_prod(A, 0))
        run("kvp1", lambda: kv_prod(A, 1))
        kk = run("kvs", lambda: kv_scatter(A))
        kk = run("kva", lambda: kv_atomics(A), lo=kk + 1)
        kk = run("kvw8", lambda: A.wait_vm(A.kv_at), lo=kk + OPT.get("kvdgap", 1))
        def kvd():
            lab = a.newlabel("Lkd")
            a("s_cmp_lg_u32 s24, 0"); a(f"s_cbranch_scc1 {lab}")
            a("s_lshl_b32 s80, s26, 11"); a("s_lshl_b32 s81, s25, 7"); a("s_add_u32 s80, s80, s81")
            store_flag(A)
            a.label(lab)
        run("kvd", kvd, lo=kk + 1)
    while R.k < NS: R.close()
    if OPT.get("verbose"):
        for k in sorted(R.log): print(typ, k, R.log[k])
    if OPT.get("segstamp"):
        a(f"s_add_u32 s64, s22, {WS_STAMP}"); a("s_addc_u32 s65, s23, 0"); a("s_mov_b32 s66, 0x100000"); a("s_mov_b32 s67, 0x00020000")
        a("s_lshl_b32 s82, s2, 2"); a("s_add_u32 s82, s82, s24"); a("s_lshl_b32 s82, s82, 8")
        a(f"v_lshlrev_b32 v6, 2, v{AV_LANE}")
        a("buffer_store_dword v7, v6, s[64:67], s82 offen")

NAME = ['front_kernel']
def gen_front(name="front_kernel", stamp=0, mapv=None):
    mapv = OPT.get("mapv", 0) if mapv is None else mapv
    NAME[0] = name
    a = Asm(); a.L.append(head(name))
    if stamp: a("s_memrealtime s[100:101]")
    if OPT.get("segstamp"): a("s_memtime s[100:101]")
    a("s_cmp_ge_u32 s2, 256")
    a(f"s_cbranch_scc1 {name}_end")
    a("s_load_dwordx4 s[4:7], s[0:1], 0")
    a("s_load_dwordx2 s[8:9], s[0:1], 16")
    a("s_load_dwordx4 s[12:15], s[0:1], 32")
    a("s_load_dwordx2 s[16:17], s[0:1], 48")
    a("s_load_dwordx4 s[20:23], s[0:1], 64")
    a("v_lshrrev_b32 v1, 6, v0")
    a("s_and_b32 s83, s2, 7")
    a("v_readfirstlane_b32 s3, v1")
    a("s_lshr_b32 s84, s2, 3")
    if mapv == 0:
        a("s_and_b32 s25, s83, 1"); a("s_lshl_b32 s25, s25, 3"); a("s_and_b32 s85, s84, 7"); a("s_add_u32 s25, s25, s85")
        a("s_lshr_b32 s85, s83, 1"); a("s_lshr_b32 s86, s84, 3")
        a("s_lshr_b32 s27, s86, 1")
        a("s_lshl_b32 s26, s85, 1"); a("s_and_b32 s86, s86, 1"); a("s_add_u32 s26, s26, s86")
    else:
        a("s_and_b32 s25, s83, 3"); a("s_lshl_b32 s25, s25, 2"); a("s_and_b32 s85, s84, 3"); a("s_add_u32 s25, s25, s85")
        a("s_lshr_b32 s85, s83, 2"); a("s_lshr_b32 s86, s84, 2")
        a("s_lshr_b32 s27, s86, 2")
        a("s_lshl_b32 s26, s85, 2"); a("s_and_b32 s86, s86, 3"); a("s_add_u32 s26, s26, s86")
    a("s_lshl_b32 s19, s27, 3")
    a("s_add_u32 s19, s19, s26")
    a("s_and_b32 s24, s3, 3")
    a("s_cmp_ge_u32 s3, 4")
    a(f"s_cbranch_scc1 {name}_aux")
    def fin_stamp():
        if stamp:
            a("s_waitcnt vmcnt(0) lgkmcnt(0)")
            a("s_memrealtime s[80:81]")
            a("s_waitcnt lgkmcnt(0)")
            a(f"s_add_u32 s64, s22, {WS_STAMP}"); a("s_addc_u32 s65, s23, 0"); a("s_mov_b32 s66, 65536"); a("s_mov_b32 s67, 0x00020000")
            a("s_lshl_b32 s82, s2, 3"); a("s_add_u32 s82, s82, s3"); a("s_lshl_b32 s82, s82, 4")
            a("v_mov_b32 v0, s100"); a("v_mov_b32 v1, s101"); a("v_mov_b32 v2, s80"); a("v_mov_b32 v3, s81"); a("v_mov_b32 v4, s82")
            a("s_mov_b64 exec, 1")
            a("buffer_store_dwordx4 v[0:3], v4, s[64:67], 0 offen")
    a("s_waitcnt lgkmcnt(0)")
    compute_setup(a, None)
    a("s_cmp_eq_u32 s27, 1")
    a(f"s_cbranch_scc1 {name}_ckv")
    for typ in ("Q", "KV"):
        if typ == "KV": a.label(f"{name}_ckv")
        gen_compute(a, typ)
        fin_stamp()
        a("s_endpgm")
    a.label(f"{name}_aux")
    a("s_waitcnt lgkmcnt(0)")
    if OPT.get("segstamp"):
        a("s_memtime s[18:19]") if False else None
        a("s_memtime s[96:97]"); a("s_waitcnt lgkmcnt(0)"); a("v_writelane_b32 v7, s96, 59")
    srd(a, 28, 6, 7, D * 3 * D * 2)
    a("s_cmp_eq_u32 s27, 1")
    a(f"s_cbranch_scc1 {name}_akv")
    for typ in ("Q", "KV"):
        if typ == "KV": a.label(f"{name}_akv")
        aux_setup_early(a, typ)
        gen_aux(a, typ)
        fin_stamp()
        a("s_endpgm")
    a.label(f"{name}_end")
    a("s_endpgm")
    return a.text() + kd(name, 256, 256), LDS_BYTES
```

```python
from asmlib import *
from layout import *

def gen_final(name="final_kernel", stamp=False, mapv=0, DEP=3):
    a = Asm()
    a.L.append(head(name))
    if stamp: a("s_memrealtime s[90:91]")
    if stamp == 2: a('s_memtime s[58:59]')
    NSLOT = 19
    a("s_cmp_ge_u32 s2, 256")
    a(f"s_cbranch_scc1 {name}_end")
    a("s_load_dwordx2 s[4:5], s[0:1], 0")
    a("s_load_dwordx2 s[6:7], s[0:1], 56")
    a("s_load_dwordx2 s[8:9], s[0:1], 72")
    a("v_and_b32 v1, 63, v0")
    a("v_lshrrev_b32 v2, 6, v0")
    a("v_and_b32 v3, 15, v1")
    a("v_readfirstlane_b32 s20, v2")
    a("v_lshrrev_b32 v4, 4, v1")
    a("s_and_b32 s21, s2, 7")
    a("s_lshr_b32 s22, s2, 3")
    a("s_lshr_b32 s23, s21, 1")
    a("s_lshl_b32 s23, s23, 3")
    a("s_lshr_b32 s24, s22, 2")
    a("s_add_u32 s23, s23, s24")
    a("s_and_b32 s24, s21, 1")
    a("s_lshl_b32 s24, s24, 2")
    a("s_and_b32 s25, s22, 3")
    a("s_add_u32 s24, s24, s25")
    if mapv == 1:
        a("s_mov_b32 s23, 0"); a("s_mov_b32 s24, 0")
    elif mapv == 2:
        a("s_lshl_b32 s23, s21, 2"); a("s_lshr_b32 s24, s22, 3"); a("s_add_u32 s23, s23, s24"); a("s_and_b32 s24, s22, 7")
    elif mapv == 3:
        a("s_mov_b32 s23, s22"); a("s_mov_b32 s24, s21")
    elif mapv == 4:
        a("s_mov_b32 s23, s21"); a("s_and_b32 s24, s22, 7")
    a("v_lshrrev_b32 v5, 1, v4")
    a("v_lshlrev_b32 v5, 10, v5")
    a("v_and_b32 v6, 1, v4")
    a("v_lshlrev_b32 v6, 9, v6")
    a("v_add_u32 v5, v5, v6")
    a("v_lshlrev_b32 v6, 4, v3")
    a("v_add_u32 v5, v5, v6")
    a("v_lshlrev_b32 v6, 4, v1")
    a("v_add_u32 v7, 0x1000, v6")
    a(f"s_mul_i32 s26, s23, {2*NBLK*1024}")
    a("s_lshl_b32 s29, s20, 11")
    a("s_add_u32 s26, s26, s29")
    a(f"s_add_u32 s27, s26, {NBLK*1024}")
    a("s_mul_i32 s28, s24, 5120")
    a("s_mul_i32 s29, s20, 40960")
    a("s_add_u32 s28, s28, s29")
    for p in range(3):
        a(f"v_add_u32 v14, {256*p}, v0")
        a("v_mul_u32_u24 v15, 205, v14")
        a("v_lshrrev_b32 v15, 11, v15")
        a("v_mul_u32_u24 v16, 10, v15")
        a("v_sub_u32 v16, v14, v16")
        a(f"v_mul_u32_u24 v17, 336, v15")
        a(f"v_lshlrev_b32 v18, 5, v16")
        a(f"v_add_u32 v{11+p}, v17, v18")
        a(f"v_mul_u32_u24 v17, 1280, v15")
        a(f"v_lshlrev_b32 v18, 4, v16")
        a(f"v_add_u32 v{8+p}, v17, v18")
    a(f"s_mul_i32 s30, s23, {64*1280}")
    a("s_mul_i32 s31, s24, 160")
    a("s_add_u32 s30, s30, s31")
    a("s_waitcnt lgkmcnt(0)")
    srd(a, 32, 8, 9, ACT_BYTES, WS_ACT)
    srd(a, 36, 8, 9, W2P_BYTES, WS_W2P)
    srd(a, 40, 4, 5, S * D * 2)
    srd(a, 44, 6, 7, S * D * 2)
    FB = 32
    def Wf(k, j): return FB + 36 * k + 4 * j
    def Af(k, i): return FB + 36 * k + 20 + 4 * i
    def loadW(k, j):
        if j < 4: a(f"buffer_load_dwordx4 {vr(Wf(k,j),4)}, v6, s[36:39], s28 offen offset:{j*1024}")
        else: a(f"buffer_load_dwordx4 {vr(Wf(k,j),4)}, v7, s[36:39], s28 offen")
    def loadA(k, i):
        so = "s26" if i < 2 else "s27"
        a(f"buffer_load_dwordx4 {vr(Af(k,i),4)}, v5, s[32:35], {so} offen offset:{(i&1)*256}")
    def adv():
        a("s_add_u32 s26, s26, 8192")
        a("s_add_u32 s27, s27, 8192")
        a(f"s_add_u32 s28, s28, {4*40960}")
    for k in range(DEP):
        for j in range(4): loadW(k, j)
        for i in range(4): loadA(k, i)
        loadW(k, 4)
        adv()
    a("v_cmp_gt_u32 vcc, 128, v0")
    a("v_mov_b32 v14, 0x7fffff00")
    a("s_nop 1")
    a("v_cndmask_b32 v10, v14, v10, vcc")
    for p in range(3):
        a(f"buffer_load_dwordx4 {vr(20+4*p,4)}, v{8+p}, s[40:43], s30 offen")
    if stamp == 2: a('s_memtime s[60:61]')
    for r in range(80):
        a(f"v_accvgpr_write_b32 a{r}, 0")
    def block(k, loads, vm):
        a(f"s_waitcnt vmcnt({vm})")
        for j in range(5):
            for i in range(4):
                acc = ar(4 * (i * 5 + j), 4)
                a(f"v_mfma_f32_16x16x32_bf16 {acc}, {vr(Wf(k,j),4)}, {vr(Af(k,i),4)}, {acc}")
                if loads and j == 4: loadA(k, i)
            if loads: loadW(k, j)
        if loads: adv()
    for n in range(NSLOT):
        k = n % DEP
        loads = n + DEP < NSLOT
        inflight_after = min(NSLOT - 1, n + DEP - 1) - n
        vm = 9 * inflight_after + (3 if n < DEP else 0)
        if loads and n + DEP == NSLOT - 1:
            a("s_cmp_ge_u32 s20, 2")
            a("s_cselect_b32 s26, 0x7ff00000, s26")
            a("s_cselect_b32 s27, 0x7ff00000, s27")
            a("s_cselect_b32 s28, 0x7ff00000, s28")
        block(k, loads, vm)
    if stamp == 2: a('s_memtime s[66:67]')
    a("v_mul_u32_u24 v14, 336, v3")
    a("v_lshlrev_b32 v15, 4, v4")
    a("v_add_u32 v14, v14, v15")
    a("s_mul_i32 s29, s20, 21504")
    a("v_add_u32 v14, s29, v14")
    a("s_nop 7")
    for i in range(4):
        for j in range(5):
            a(f"ds_write_b128 v14, {ar(4*(i*5+j),4)} offset:{i*5376+j*64}")
    a("s_waitcnt lgkmcnt(0)")
    a("s_barrier")
    def fin(p):
        b = 40
        for w in range(4):
            a(f"ds_read_b128 {vr(b+8*w,4)}, v{11+p} offset:{w*21504}")
            a(f"ds_read_b128 {vr(b+8*w+4,4)}, v{11+p} offset:{w*21504+16}")
        xb = 20 + 4 * p
        for q in range(4):
            a(f"v_lshlrev_b32 v{80+2*q}, 16, v{xb+q}")
            a(f"v_and_b32 v{81+2*q}, 0xffff0000, v{xb+q}")
        a("s_waitcnt lgkmcnt(4)")
        for e in range(8): a(f"v_add_f32 v{b+e}, v{b+e}, v{b+8+e}")
        a("s_waitcnt lgkmcnt(0)")
        for e in range(8): a(f"v_add_f32 v{b+16+e}, v{b+16+e}, v{b+24+e}")
        for e in range(8): a(f"v_add_f32 v{b+e}, v{b+e}, v{80+e}")
        for e in range(8): a(f"v_add_f32 v{b+e}, v{b+e}, v{b+16+e}")
        for q in range(4): a(f"v_cvt_pk_bf16_f32 v{88+q}, v{b+2*q}, v{b+2*q+1}")
        a(f"buffer_store_dwordx4 {vr(88,4)}, v{8+p}, s[44:47], s30 offen")
        a("s_nop 1")
    if stamp == 2: a('s_memtime s[68:69]')
    fin(0); fin(1)
    a("s_cmp_ge_u32 s20, 2")
    a(f"s_cbranch_scc1 {name}_done")
    fin(2)
    a.label(f"{name}_done")
    if stamp == 2:
        a("s_memtime s[70:71]")
        a("s_waitcnt vmcnt(0) lgkmcnt(0)")
        a(f"s_add_u32 s96, s8, {WS_STAMP}")
        a(f"s_addc_u32 s97, s9, 0")
        a("s_mov_b32 s98, 65536")
        a("s_mov_b32 s99, 0x00020000")
        a(f"s_mul_i32 s94, s2, 4")
        a(f"s_add_u32 s94, s94, s20")
        a("s_lshl_b32 s94, s94, 5")
        for i in range(6):
            a(f"s_sub_u32 s95, s{60+2*i}, s58")
            a(f"v_mov_b32 v{i}, s95")
        a("v_mov_b32 v8, s94")
        a("s_mov_b64 exec, 1")
        a("buffer_store_dwordx4 v[0:3], v8, s[96:99], 0 offen")
        a("buffer_store_dwordx2 v[4:5], v8, s[96:99], 0 offen offset:16")
    elif stamp:
        stamp_out(a, 8, 9, 4, "s20", slot=1)
    a.label(f"{name}_end")
    a("s_endpgm")
    return a.text() + kd(name, 512, 256), 4 * 21504
```
